```python
import torch

def _softmax(x, axis=-1):
    return torch.softmax(x, dim=axis)
def _gelu(x):
    return torch.nn.functional.gelu(x, approximate="tanh")
def _silu(x):
    return torch.nn.functional.silu(x)
def _sigmoid(x):
    return torch.sigmoid(x)
def _layernorm(x, axis=-1, eps=1e-5):
    m = x.mean(dim=axis, keepdim=True)
    v = x.var(dim=axis, keepdim=True, unbiased=False)
    return (x - m) / torch.sqrt(v + eps)
def _scatter_add(tgt, idx, src, axis=0):
    return tgt.clone().index_add_(axis, idx, src)
def _segment_sum(src, seg, n):
    out = torch.zeros((n,) + src.shape[1:], dtype=src.dtype)
    return out.index_add_(0, seg, src)
def _pad(x, pw):
    flat = tuple(v for pair in reversed(pw) for v in pair)
    return torch.nn.functional.pad(x, flat)

kernel_name = 'recurrent_scan__mha_block_cached__geglu_ffn__decode'

def setup_inputs():

    _w = (lambda a: (lambda t: t.to(torch.bfloat16) if t.is_floating_point() else t)(torch.as_tensor(a)))
    def _A_setup():
        B, Sq, D = 4, 1, 640
        H, Sk, Dh = 32, 4096, 192
        return {
            "x": _w((lambda *s: torch.randn(*s, dtype=torch.bfloat16) * 0.05)(B, Sq, D)),
            "k_cache": _w((lambda *s: torch.randn(*s, dtype=torch.bfloat16) * 1.6)(B, H, Sk, Dh)),
            "v_cache": _w((lambda *s: torch.randn(*s, dtype=torch.bfloat16) * 0.2)(B, H, Sk, Dh)),
            "wq": _w((lambda *s: torch.randn(*s, dtype=torch.bfloat16) * 1.6)(D, H * Dh) * (D ** -0.5)),
            "wo": _w((lambda *s: torch.randn(*s, dtype=torch.bfloat16) * 0.2)(H * Dh, D) * ((H * Dh) ** -0.5)),
        }
    _A_in = _A_setup()

    def _B_setup():
        B, S, D, F = 4, 1, 640, 1536
        return {
            "x": _w((lambda *s: torch.randn(*s, dtype=torch.bfloat16) * 0.05)(B, S, D)),
            "w_gate": _w((lambda *s: torch.randn(*s, dtype=torch.bfloat16) * 0.1)(D, F)),
            "w_up": _w((lambda *s: torch.randn(*s, dtype=torch.bfloat16) * 0.1)(D, F)),
            "w_down": _w((lambda *s: torch.randn(*s, dtype=torch.bfloat16) * 0.1)(F, D)),
        }
    _B_in = _B_setup()

    return {
        "A_x": _A_in["x"],
        "A_k_cache": _A_in["k_cache"],
        "A_v_cache": _A_in["v_cache"],
        "A_wq": _A_in["wq"],
        "A_wo": _A_in["wo"],
        "B_x": _B_in["x"],
        "B_w_gate": _B_in["w_gate"],
        "B_w_up": _B_in["w_up"],
        "B_w_down": _B_in["w_down"],
    }

def reference(A_x, A_k_cache, A_v_cache, A_wq, A_wo, B_x, B_w_gate, B_w_up, B_w_down):
    def _A_ref(x, k_cache, v_cache, wq, wo):
        B, Sq, D = x.shape
        H, Dh = 32, 192
        q = (lambda x, *d: x.permute(*d))((x @ wq).reshape(B, Sq, H, Dh), 0, 2, 1, 3)
        scores = torch.einsum("bhqd,bhkd->bhqk", q, k_cache) * (Dh ** -0.5)
        p = _softmax(scores, axis=-1)
        o = torch.einsum("bhqk,bhkd->bhqd", p, v_cache)
        return (lambda x, *d: x.permute(*d))(o, 0, 2, 1, 3).reshape(B, Sq, H * Dh) @ wo

    def _B_ref(x, w_gate, w_up, w_down):
        return (_gelu(x @ w_gate) * (x @ w_up)) @ w_down

    x = A_x
    xn = _layernorm(x, axis=-1)
    s = _A_ref(xn, A_k_cache, A_v_cache, A_wq, A_wo)
    g = _silu(_B_ref(xn, B_w_gate, B_w_up, B_w_down))
    return x + s * g
```

```python
import re

TRANS = ("v_exp_f32","v_log_f32","v_rcp_f32","v_rsq_f32","v_sqrt_f32","v_sin_f32","v_cos_f32","v_rcp_iflag_f32")
RMW_DST = ("v_fmac_f32","v_dot2c_f32_bf16","v_dot2c_f32_f16","v_pk_fmac_f16","v_mac_f32","v_writelane_b32")
REG_RE = re.compile(r"^(-|abs\(|\|)?([vsa])(\d+)\)?\|?$")
RNG_RE = re.compile(r"^(-)?([vsa])\[(\d+):(\d+)\]$")

def regs_of(tok):
    tok = tok.strip()
    m = REG_RE.match(tok)
    if m: return {(m.group(2), int(m.group(3)))}
    m = RNG_RE.match(tok)
    if m: return {(m.group(2), i) for i in range(int(m.group(3)), int(m.group(4))+1)}
    if tok == "vcc": return {("s",106),("s",107)}
    if tok == "vcc_lo": return {("s",106)}
    if tok == "vcc_hi": return {("s",107)}
    if tok == "exec": return {("s",126),("s",127)}
    if tok == "exec_lo": return {("s",126)}
    if tok == "exec_hi": return {("s",127)}
    if tok == "m0": return {("s",124)}
    return set()

class Ins:
    def __init__(self, text):
        self.text = text
        t = text.split(";")[0].strip()
        self.is_label = t.endswith(":") and " " not in t
        self.is_dir = t.startswith(".") and not self.is_label
        self.mn = ""
        self.wr = set(); self.rd = set()
        self.kind = None
        if not t or self.is_label or self.is_dir:
            if self.is_label: self.label = t[:-1]
            return
        parts = t.split(None, 1)
        mn = parts[0]
        for suf in ("_e32","_e64","_dpp","_sdwa"):
            if mn.endswith(suf):
                mn = mn[:-len(suf)]
        self.mn = mn
        rest = parts[1] if len(parts) > 1 else ""
        ops = [o.strip() for o in rest.split(",")] if rest else []
        mods = ""
        m = re.search(r"\s(quad_perm|row_|wave_|op_sel|neg_|offset|offen|idxen|sc0|sc1|nt\b|lds\b|glc|bitop3|clamp|mul:|div:|cbsz|abid|blgp|row_mask|bank_mask|bound_ctrl|off\b|dst_sel|src0_sel|src1_sel|dst_unused|gds)", " "+rest)
        if m:
            body = (" "+rest)[:m.start()]
            mods = (" "+rest)[m.start():]
            ops = [o.strip() for o in body.split(",") if o.strip()]
        self.ops = ops; self.mods = mods
        self.dpp = bool(re.search(r"quad_perm|row_shl|row_shr|row_ror|wave_|row_mirror|row_half_mirror|row_bcast|row_newbcast", mods))
        self.sdwa = "_sel:" in mods
        R = [regs_of(o) for o in ops]
        if mn.startswith("v_mfma") or mn.startswith("v_smfmac"):
            self.kind = "mfma"
            self.wr = R[0]; self.a = R[1]; self.b = R[2]; self.c = R[3] if len(R) > 3 else set()
            self.rd = self.a | self.b | self.c
            self.passes = 8 if "32x32" in mn else 4
            if "4x4x4" in mn: self.passes = 2
        elif mn.startswith("v_"):
            self.kind = "valu"
            if mn.startswith("v_cmp"):
                self.wr = R[0]; self.rd = set().union(*R[1:]) if len(R) > 1 else set()
                if mn.startswith("v_cmpx"): self.wr |= regs_of("exec")
            elif mn in ("v_add_co_u32","v_sub_co_u32","v_subrev_co_u32","v_addc_co_u32","v_subb_co_u32","v_subbrev_co_u32","v_mad_u64_u32","v_div_scale_f32"):
                self.wr = R[0] | R[1]; self.rd = set().union(*R[2:])
            elif mn.startswith("v_permlane") and "swap" in mn:
                self.wr = R[0] | R[1]; self.rd = R[0] | R[1]
            elif mn == "v_nop":
                pass
            else:
                self.wr = R[0]; self.rd = set().union(*R[1:]) if len(R) > 1 else set()
                if mn in RMW_DST or self.dpp: self.rd |= R[0]
                if mn in ("v_cndmask_b32",) and len(ops) == 3: self.rd |= regs_of("vcc")
        elif mn.startswith(("buffer_","global_","flat_","scratch_")):
            self.kind = "vmem"
            allr = set().union(*R) if R else set()
            if mn.startswith("buffer_"):
                if "lds" in mods.split() or mn in ("buffer_inv","buffer_wbl2"):
                    self.rd = allr; self.ldsdma = "lds" in mods.split()
                elif "load" in mn:
                    self.wr = R[0]; self.rd = set().union(*R[1:])
                elif "atomic" in mn:
                    self.rd = allr
                    if "sc0" in mods.split(): self.wr = R[0]
                    self.data = R[0]
                else:
                    self.rd = allr; self.data = R[0]
            else:
                if "load_lds" in mn:
                    self.rd = allr; self.ldsdma = True
                elif "load" in mn:
                    self.wr = R[0]; self.rd = set().union(*R[1:])
                elif "atomic" in mn:
                    if "sc0" in mods.split():
                        self.wr = R[0]; self.rd = set().union(*R[1:]); self.data = R[2]
                    else:
                        self.rd = allr; self.data = R[1]
                else:
                    self.rd = allr; self.data = R[1]
        elif mn.startswith("ds_"):
            self.kind = "ds"
            if mn.startswith(("ds_read","ds_bpermute","ds_permute","ds_swizzle")) or "_rtn" in mn:
                self.wr = R[0]; self.rd = set().union(*R[1:]) if len(R) > 1 else set()
            else:
                self.rd = set().union(*R) if R else set()
        elif mn.startswith("s_"):
            self.kind = "salu"
            if mn in ("s_nop",):
                self.kind = "nop"; self.n = int(ops[0], 0) + 1 if ops else 1
            elif mn.startswith(("s_waitcnt","s_barrier","s_endpgm","s_sleep","s_setprio","s_branch","s_cbranch","s_sethalt")):
                self.kind = "ctl"
            elif mn.startswith(("s_cmp","s_bitcmp")):
                self.rd = set().union(*R) if R else set()
            elif mn.startswith(("s_load","s_buffer_load","s_memtime","s_memrealtime","s_atomic")):
                self.kind = "smem"; self.wr = R[0]; self.rd = set().union(*R[1:]) if len(R) > 1 else set()
            elif mn in ("s_setpc_b64",):
                self.rd = R[0]
            else:
                self.wr = R[0] if R else set(); self.rd = set().union(*R[1:]) if len(R) > 1 else set()
                if "saveexec" in mn: self.wr |= regs_of("exec"); self.rd |= regs_of("exec")
        else:
            raise ValueError("unknown instr: " + text)
    def states(self):
        if self.kind == "nop": return self.n
        if self.kind is None: return 0
        return 1

def V(s): return {r for r in s if r[0] in ("v","a")}
def S(s): return {r for r in s if r[0] == "s"}

def need(p, c):
    n = 0
    if p.kind == "valu":
        pv, ps = V(p.wr), S(p.wr)
        if c.kind == "valu":
            if c.dpp and pv & V(c.rd): n = max(n, 2)
            if c.mn in ("v_readlane_b32","v_readfirstlane_b32") and pv & V(c.rd): n = max(n, 1)
            if c.mn.startswith("v_permlane") and pv & V(c.rd): n = max(n, 2)
            if ps & S(c.rd):
                n = max(n, 4 if c.mn in ("v_readlane_b32","v_writelane_b32") else 2)
            if p.mn in TRANS and pv & V(c.rd): n = max(n, 1)
            if p.sdwa and pv & (V(c.rd) | V(c.wr)): n = max(n, 1)
            if ("s",126) in ps:
                n = max(n, 5 if c.dpp else 4)
        if c.kind == "mfma":
            if pv & V(c.rd): n = max(n, 2)
            if ("s",126) in ps: n = max(n, 4)
        if c.kind == "vmem" and ps & S(c.rd): n = max(n, 5)
        if c.kind in ("salu","smem") and ps & S(c.rd): n = max(n, 1)
        if p.mn.startswith("v_dot"):
            if c.kind == "valu":
                if c.mn == p.mn:
                    ab = set().union(*[regs_of(o) for o in c.ops[1:3]]) if len(c.ops) >= 3 else set()
                    if pv & V(ab): n = max(n, 3)
                elif pv & (V(c.rd) | V(c.wr)): n = max(n, 3)
            elif c.kind in ("mfma","vmem","ds") and pv & (V(c.rd) | V(c.wr)): n = max(n, 3)
    if p.kind == "mfma":
        k = {2:0, 4:1, 8:2, 16:3}[p.passes]
        d = V(p.wr)
        if c.kind == "mfma":
            if d & (c.a | c.b): n = max(n, (5,8,12,20)[k])
            if d & c.c:
                if c.c == d and c.passes == p.passes: n = max(n, (2,0,0,0)[k])
                else: n = max(n, (4,6,10,18)[k])
            elif d & V(c.wr): n = max(n, (5,8,12,20)[k])
        elif c.kind == "valu":
            if d & (V(c.rd) | V(c.wr)): n = max(n, (5,8,12,20)[k])
            if V(p.c) & V(c.wr): n = max(n, (1,3,7,15)[k])
        elif c.kind in ("vmem","ds"):
            if d & (V(c.rd) | V(c.wr)): n = max(n, (5,8,12,20)[k])
    if p.kind == "vmem" and hasattr(p, "data") and len(V(p.data)) >= 3:
        if c.kind in ("valu","mfma") and V(p.data) & V(c.wr): n = max(n, 2)
        elif c.kind in ("vmem","ds") and V(p.data) & V(c.wr): n = max(n, 1)
    if p.kind == "ds" and p.mn in ("ds_write_b128","ds_write_b96"):
        pass
    if p.kind == "salu" and ("s",124) in p.wr:
        if c.kind == "vmem" and getattr(c, "ldsdma", False): n = max(n, 1)
        if c.kind == "ds" and "addtid" in c.mn: n = max(n, 1)
    return n

class Asm:
    def __init__(self):
        self.items = []
    def __call__(self, text):
        for line in text.split("\n"):
            line = line.strip()
            if not line or line.startswith(";"): continue
            self.items.append(Ins(line))
    def label(self, name):
        self.items.append(Ins(name + ":"))
    def raw(self, text):
        i = Ins(""); i.text = text; self.items.append(i)
    def _deficit(self, prev, c):
        dist = 0; worst = 0
        for p in reversed(prev):
            if p.kind is None: continue
            nd = need(p, c)
            if nd > dist: worst = max(worst, nd - dist)
            dist += p.states()
            if dist >= 21: break
        return worst
    def finalize(self):
        out = []
        for c in self.items:
            if c.kind is not None and c.kind != "nop":
                d = self._deficit(out[-40:], c)
                if d > 0: out.append(Ins(f"s_nop {d-1}"))
            out.append(c)
        changed = True
        while changed:
            changed = False
            labels = {c.label: i for i, c in enumerate(out) if c.is_label}
            for i, c in enumerate(out):
                if c.kind == "ctl" and c.mn.startswith(("s_branch","s_cbranch")):
                    tgt = c.ops[0]
                    if tgt not in labels: raise ValueError("unknown label " + tgt)
                    j = labels[tgt]
                    prev = [x for x in out[max(0,i-40):i+1]]
                    k = j+1; seen = []
                    while k < len(out) and sum(x.states() for x in seen) < 21:
                        x = out[k]
                        if x.kind is not None:
                            if x.kind != "nop":
                                d = self._deficit(prev + seen, x)
                                if d > 0:
                                    out.insert(j+1, Ins(f"s_nop {d-1}")); changed = True; break
                            seen.append(x)
                            if x.kind == "ctl" and x.mn in ("s_branch","s_endpgm"): break
                        k += 1
                    if changed: break
        self.out = out
        return "\n".join(("" if (c.is_label or c.is_dir) else "  ") + c.text for c in out) + "\n"
```

```python
from asmlib import Asm
KN = "recurrent_scan__mha_block_cached__geglu_ffn__decode_kernel"
B, D, H, SK, DH, F = 4, 640, 32, 4096, 192, 1536
KV_BYTES = B*H*SK*DH*2
P_X, P_K, P_V, P_WQ, P_WO, P_BX, P_WG, P_WU = "s[4:5]","s[6:7]","s[8:9]","s[10:11]","s[12:13]","s[14:15]","s[16:17]","s[18:19]"
P_WD, P_OUT, P_DBG, P_WS = "s[20:21]","s[22:23]","s[24:25]","s[26:27]"
WS_QP  = 0x000000
WS_AP  = 0x100000
WS_Y   = 0x200000
WS_GP  = 0x300000
WS_CNT = 0x400000
WS_STAMP = 0x500000
LOG2E = 0x3FB8AA3B
SCALE = 0x3D93CD3A

def pair(p):
    lo, hi = p[2:-1].split(":"); return f"s{lo}", f"s{hi}"
def srd(a, s, ptr, size):
    lo, hi = pair(ptr)
    a(f"s_mov_b32 s{s}, {lo}"); a(f"s_mov_b32 s{s+1}, {hi}"); a(f"s_mov_b32 s{s+2}, {size}"); a(f"s_mov_b32 s{s+3}, 0x20000")
def load_args(a):
    a("s_load_dwordx16 s[4:19], s[0:1], 0"); a("s_load_dwordx8 s[20:27], s[0:1], 64")
DPPM = "row_mask:0xf bank_mask:0xf"
def allreduce(a, op, v, tmp):
    for d in ("quad_perm:[1,0,3,2]","quad_perm:[2,3,0,1]","row_half_mirror","row_mirror"):
        a(f"{op}_dpp {v}, {v}, {v} {d} {DPPM}")
    a(f"v_mov_b32 {tmp}, {v}"); a(f"v_permlane16_swap_b32 {v}, {tmp}"); a(f"{op} {v}, {v}, {tmp}")
    a(f"v_mov_b32 {tmp}, {v}"); a(f"v_permlane32_swap_b32 {v}, {tmp}"); a(f"{op} {v}, {v}, {tmp}")
def bf16r(a, dst, src):
    a(f"v_cvt_pk_bf16_f32 {dst}, {src}, {src}"); a(f"v_and_b32 {dst}, 0xffff0000, {dst}")
def sel_by_group(a, dst, d, vg):
    a(f"v_mov_b32 {dst}, {d[0]}")
    for k in (1,2,3):
        a(f"v_cmp_eq_u32 vcc, {k}, {vg}"); a(f"v_cndmask_b32 {dst}, {dst}, {d[k]}, vcc")
def kernel_header(a, name):
    a.raw(f".globl {name}"); a.raw(".p2align 8"); a.raw(f".type {name},@function"); a.raw(f"{name}:")
def kernel_desc(name, nv, ns=96):
    nv8 = (nv+7)//8*8
    return "\n".join([f".amdhsa_kernel {name}", f"  .amdhsa_next_free_vgpr {nv8}", f"  .amdhsa_next_free_sgpr {ns}",
      f"  .amdhsa_accum_offset {min(256,(nv8+3)//4*4)}", "  .amdhsa_group_segment_fixed_size 0", "  .amdhsa_kernarg_size 96",
      "  .amdhsa_user_sgpr_count 2", "  .amdhsa_user_sgpr_kernarg_segment_ptr 1", "  .amdhsa_system_sgpr_workgroup_id_x 1",
      "  .amdhsa_float_denorm_mode_32 3", ".end_amdhsa_kernel"])
```

```python
from common import *

XN   = 0
XS   = 1344
CTR  = 5376
HID  = 5440
HS   = 144
RED  = 6144
QT   = 14336
OT   = 15872
OS   = 400
FL   = 17664
FLS  = 800
PAN  = 30720

def lane_setup(a):
    a("v_and_b32 v1, 63, v0"); a("v_lshrrev_b32 v2, 6, v0"); a("v_readfirstlane_b32 s31, v2")

def ids(a):
    a("s_lshr_b32 s28, s2, 3"); a("s_and_b32 s29, s2, 7"); a("s_add_u32 s30, s28, s29"); a("s_and_b32 s30, s30, 7")

def ln_issue(a, wave="s31", srd0=32):
    srd(a, srd0, P_X, B*D*2)
    a(f"s_mul_i32 s40, {wave}, 1280"); a("v_lshl_add_u32 v3, v1, 2, s40")
    for i in range(5):
        a(f"buffer_load_dword v{10+i}, v3, s[{srd0}:{srd0+3}], 0 offen offset:{i*256}")

def ln_compute(a, wave="s31"):
    for i in range(5):
        a(f"v_lshlrev_b32 v{20+2*i}, 16, v{10+i}"); a(f"v_and_b32 v{21+2*i}, 0xffff0000, v{10+i}")
    a("v_add_f32 v30, v20, v21")
    for i in range(2, 10): a(f"v_add_f32 v30, v30, v{20+i}")
    allreduce(a, "v_add_f32", "v30", "v31")
    a("v_mul_f32 v30, 0x3acccccd, v30")
    a("v_sub_f32 v32, v20, v30"); a("v_mul_f32 v33, v32, v32")
    for i in range(1, 10):
        a(f"v_sub_f32 v32, v{20+i}, v30"); a("v_fmac_f32 v33, v32, v32")
    allreduce(a, "v_add_f32", "v33", "v31")
    a("v_mul_f32 v33, 0x3acccccd, v33")
    bf16r(a, "v33", "v33")
    a("v_add_f32 v33, 0x3727c5ac, v33"); bf16r(a, "v33", "v33")
    a("v_sqrt_f32 v33, v33"); bf16r(a, "v33", "v33")
    a("v_rcp_f32 v34, v33")
    bf16r(a, "v30", "v30")
    for i in range(10): a(f"v_sub_f32 v{20+i}, v{20+i}, v30")
    for i in range(5):
        a(f"v_cvt_pk_bf16_f32 v35, v{20+2*i}, v{21+2*i}")
        a(f"v_lshlrev_b32 v{20+2*i}, 16, v35"); a(f"v_and_b32 v{21+2*i}, 0xffff0000, v35")
    for i in range(10):
        a(f"v_mul_f32 v35, v{20+i}, v34")
        a(f"v_fma_f32 v36, -v35, v33, v{20+i}")
        a(f"v_fma_f32 v{20+i}, v36, v34, v35")
    a(f"s_mul_i32 s40, {wave}, {XS}"); a("v_lshl_add_u32 v3, v1, 2, s40")
    for i in range(5):
        a(f"v_cvt_pk_bf16_f32 v35, v{20+2*i}, v{21+2*i}")
        a(f"ds_write_b32 v3, v35 offset:{XN+i*256}")

def dma_voff(a, dst, stride, t0="v2", t1="v3"):
    a(f"v_lshrrev_b32 {t0}, 3, v1"); a(f"v_and_b32 {t1}, 6, {t0}"); a(f"v_and_b32 {dst}, 7, v1")
    a(f"v_xor_b32 {dst}, {dst}, {t1}"); a(f"v_lshlrev_b32 {dst}, 4, {dst}")
    a(f"s_mov_b32 s40, {stride}"); a(f"v_mad_u32_u24 {dst}, {t0}, s40, {dst}")

def bfrag_addr(a, dst, tile, t0="v2", t1="v3"):
    a(f"v_lshrrev_b32 {t0}, 2, v1")
    a(f"v_bfe_u32 {t1}, v1, 1, 1")
    if isinstance(tile, int):
        if tile: a(f"v_or_b32 {t1}, {2*tile}, {t1}")
    else:
        a(f"s_lshl_b32 s40, {tile}, 1"); a(f"v_or_b32 {t1}, s40, {t1}")
    a(f"v_and_b32 {dst}, 6, {t0}"); a(f"v_xor_b32 {t1}, {t1}, {dst}"); a(f"v_lshlrev_b32 {t1}, 4, {t1}")
    a(f"v_lshl_add_u32 {t1}, {t0}, 7, {t1}")
    a(f"v_and_b32 {dst}, 1, v1"); a(f"v_lshl_add_u32 {dst}, {dst}, 3, {t1}")

def afrag_addr(a, dst, rowstride, t0="v2"):
    a(f"v_and_b32 {t0}, 3, v1"); a(f"s_mov_b32 s40, {rowstride}"); a(f"v_mul_u32_u24 {dst}, s40, {t0}")
    a(f"v_lshrrev_b32 {t0}, 4, v1"); a(f"v_lshl_add_u32 {dst}, {t0}, 3, {dst}")

def dma(a, voff, srd0, soff, ldsaddr, flags=""):
    a(f"s_mov_b32 m0, {ldsaddr}")
    a(f"buffer_load_dwordx4 {voff}, s[{srd0}:{srd0+3}], {soff} offen {flags} lds")

def q_issue(a, flags="nt"):
    srd(a, 36, P_WQ, D*H*DH*2)
    a("s_cmp_ge_u32 s30, 3"); a("s_cselect_b32 s41, 1, 0")
    a("s_mul_i32 s42, s41, 3"); a("s_sub_u32 s43, s30, s42")
    a("s_mul_i32 s42, s41, 320")
    a(f"s_mul_i32 s44, s42, {H*DH*2}"); a("s_mul_i32 s45, s28, 384"); a("s_add_u32 s44, s44, s45")
    a("s_lshl_b32 s45, s43, 7"); a("s_add_u32 s44, s44, s45")
    a(f"s_mul_i32 s45, s31, {8*H*DH*2}"); a("s_add_u32 s44, s44, s45")
    a("s_lshl_b32 s45, s31, 10"); a(f"s_add_u32 s45, s45, {PAN}")
    dma_voff(a, "v40", H*DH*2)
    for i in range(10):
        dma(a, "v40", 36, "s44", "s45", flags)
        if i < 9:
            a(f"s_add_u32 s44, s44, {4*8*H*DH*2}"); a("s_add_u32 s45, s45, 4096")

def q_compute(a):
    bfrag_addr(a, "v41", "s31"); a(f"v_add_u32 v41, {PAN}, v41")
    afrag_addr(a, "v45", XS); a("s_lshl_b32 s40, s42, 1"); a(f"s_add_u32 s40, s40, {XN}"); a("v_add_u32 v45, s40, v45")
    for k in range(4): a(f"v_mov_b32 v{48+k}, 0")
    for s in range(10):
        ar, br = 60+8*s, 64+8*s
        a(f"ds_read_b64 v[{ar}:{ar+1}], v45 offset:{s*64}"); a(f"ds_read_b64 v[{ar+2}:{ar+3}], v45 offset:{s*64+32}")
        a(f"ds_read_b64_tr_b16 v[{br}:{br+1}], v41 offset:{s*4096}"); a(f"ds_read_b64_tr_b16 v[{br+2}:{br+3}], v41 offset:{s*4096+2048}")
    a("s_waitcnt lgkmcnt(0)")
    for s in range(10):
        ar, br = 60+8*s, 64+8*s
        a(f"v_mfma_f32_16x16x32_bf16 v[48:51], v[{ar}:{ar+3}], v[{br}:{br+3}], v[48:51]")
    a("v_lshrrev_b32 v46, 4, v1")
    sel_by_group(a, "v52", ["v48","v49","v50","v51"], "v46")

def q_store(a, flags=""):
    a("s_lshl_b32 s44, s28, 1"); a("s_add_u32 s44, s44, s41"); a("s_mul_i32 s44, s44, 3072")
    a("s_lshl_b32 s45, s43, 8"); a("s_add_u32 s44, s44, s45"); a("s_lshl_b32 s45, s31, 6"); a("s_add_u32 s44, s44, s45")
    a(f"s_add_u32 s44, s44, {WS_QP}")
    a("v_mul_u32_u24 v2, 768, v46"); a("v_and_b32 v3, 15, v1"); a("v_lshl_add_u32 v2, v3, 2, v2"); a("v_add_u32 v2, s44, v2")
    a(f"global_store_dword v2, v52, {P_WS} {flags}")

def auxbar(a, k, tag):
    a("s_waitcnt lgkmcnt(0)")
    a(f"v_mov_b32 v2, {CTR}"); a("v_mov_b32 v3, 1")
    a("s_mov_b64 exec, 1"); a("ds_add_u32 v2, v3"); a("s_mov_b64 exec, -1")
    a("s_mov_b32 s41, 0x100000")
    a.label(f"L_ab_{tag}")
    a("ds_read_b32 v4, v2"); a("s_waitcnt lgkmcnt(0)"); a("v_readfirstlane_b32 s40, v4")
    a("s_sub_u32 s41, s41, 1"); a(f"s_cbranch_scc1 L_abx_{tag}")
    a(f"s_cmp_ge_u32 s40, {4*k}"); a(f"s_cbranch_scc0 L_ab_{tag}")
    a.label(f"L_abx_{tag}")

RING = 24576
def ffn_issue0(a, flags="nt"):
    srd(a, 36, P_WG, D*F*2); srd(a, 44, P_WU, D*F*2)
    a(f"s_mul_i32 s48, s31, {160*F*2}"); a("s_lshl_b32 s40, s28, 7"); a("s_add_u32 s48, s48, s40")
    a(f"s_mul_i32 s49, s31, {RING}"); a(f"s_add_u32 s49, s49, {PAN}")
    dma_voff(a, "v40", F*2)
    for s in range(3): ffn_issue_step(a, s, flags)
def ffn_issue_step(a, s, flags):
    for m, sr in ((0,36),(1,44)):
        for i in range(4):
            a(f"s_add_u32 s50, s48, {(s*32+i*8)*F*2}")
            a(f"s_add_u32 s51, s49, {(s%3)*8192 + m*4096 + i*1024}")
            dma(a, "v40", sr, "s50", "s51", flags)
def ffn_rest(a, tag, flags="nt", stflags=""):
    for t in range(4):
        bfrag_addr(a, f"v{41+t}", t); a(f"v_add_u32 v{41+t}, s49, v{41+t}")
    afrag_addr(a, "v45", XS); a("s_mul_i32 s40, s31, 320"); a(f"s_add_u32 s40, s40, {XN}"); a("v_add_u32 v45, s40, v45")
    for k in range(32): a(f"v_mov_b32 v{48+k}, 0")
    for s in range(5):
        out = min(5, s+3) - (s+1)
        a(f"s_waitcnt vmcnt({8*out})")
        a(f"ds_read_b64 v[80:81], v45 offset:{s*64}"); a(f"ds_read_b64 v[82:83], v45 offset:{s*64+32}")
        for m in range(2):
            for t in range(4):
                br = 84 + (m*4+t)*4; off = (s%3)*8192 + m*4096
                a(f"ds_read_b64_tr_b16 v[{br}:{br+1}], v{41+t} offset:{off}")
                a(f"ds_read_b64_tr_b16 v[{br+2}:{br+3}], v{41+t} offset:{off+2048}")
        a("s_waitcnt lgkmcnt(0)")
        if s+3 < 5: ffn_issue_step(a, s+3, flags)
        for m in range(2):
            for t in range(4):
                br = 84 + (m*4+t)*4; ac = 48 + (m*4+t)*4
                a(f"v_mfma_f32_16x16x32_bf16 v[{ac}:{ac+3}], v[80:83], v[{br}:{br+3}], v[{ac}:{ac+3}]")
    srd(a, 36, P_WD, F*D*2)
    a("s_lshl_b32 s48, s28, 6"); a("s_lshl_b32 s40, s31, 4"); a("s_add_u32 s48, s48, s40"); a(f"s_mul_i32 s48, s48, {D*2}")
    dma_voff(a, "v40", D*2)
    for p in range(10):
        for i in range(2):
            a(f"s_add_u32 s50, s48, {i*8*D*2 + p*128}"); a(f"s_add_u32 s51, s49, {p*2048 + i*1024}")
            dma(a, "v40", 36, "s50", "s51", flags)
    a("v_lshrrev_b32 v46, 4, v1"); a("v_and_b32 v3, 15, v1"); a("v_lshlrev_b32 v3, 2, v3"); a("v_lshl_add_u32 v3, v46, 8, v3")
    a("s_lshl_b32 s40, s31, 11"); a(f"s_add_u32 s40, s40, {RED}"); a("v_add_u32 v47, s40, v3")
    for m in range(2):
        for t in range(4):
            ac = 48 + (m*4+t)*4
            sel_by_group(a, "v5", [f"v{ac+k}" for k in range(4)], "v46")
            a(f"ds_write_b32 v47, v5 offset:{m*1024 + t*64}")
    auxbar(a, 1, tag+"a")
    a("s_lshl_b32 s40, s31, 8"); a(f"s_add_u32 s40, s40, {RED}"); a("v_lshl_add_u32 v5, v1, 2, s40")
    for w in range(4):
        a(f"ds_read_b32 v{10+w}, v5 offset:{w*2048}"); a(f"ds_read_b32 v{14+w}, v5 offset:{w*2048+1024}")
    a("s_waitcnt lgkmcnt(0)")
    a("v_add_f32 v10, v10, v11"); a("v_add_f32 v12, v12, v13"); a("v_add_f32 v10, v10, v12")
    a("v_add_f32 v14, v14, v15"); a("v_add_f32 v16, v16, v17"); a("v_add_f32 v14, v14, v16")
    bf16r(a, "v10", "v10"); bf16r(a, "v14", "v14")
    a("v_mul_f32 v11, v10, v10"); a("v_mul_f32 v11, 0x3d372713, v11"); a("v_fma_f32 v11, v11, v10, v10")
    a("v_mul_f32 v11, 0xc0135761, v11"); a("v_exp_f32 v11, v11"); a("v_add_f32 v11, 1.0, v11"); a("v_rcp_f32 v11, v11")
    a("v_mul_f32 v11, v10, v11"); bf16r(a, "v11", "v11")
    a("v_mul_f32 v11, v11, v14"); a("v_cvt_pk_bf16_f32 v11, v11, v11")
    a(f"s_mul_i32 s40, s31, {HS}"); a("v_lshl_add_u32 v5, v1, 1, s40")
    a(f"ds_write_b16 v5, v11 offset:{HID}")
    auxbar(a, 2, tag+"b")
    afrag_addr(a, "v45", HS); a("s_lshl_b32 s40, s31, 5"); a(f"s_add_u32 s40, s40, {HID}"); a("v_add_u32 v45, s40, v45")
    a("ds_read_b64 v[80:81], v45")
    a("s_lshl_b32 s50, s28, 2"); a("s_add_u32 s50, s50, s31"); a("s_mul_i32 s50, s50, 2560"); a(f"s_add_u32 s50, s50, {WS_GP}")
    a("s_mov_b32 s40, 245760"); a("v_mul_lo_u32 v6, s40, v46"); a("v_and_b32 v3, 15, v1"); a("v_lshl_add_u32 v6, v3, 2, v6"); a("v_add_u32 v6, s50, v6")
    a("s_waitcnt vmcnt(0)")
    for p in range(10):
        for t in range(4):
            br = 84 + t*2
            a(f"ds_read_b64_tr_b16 v[{br}:{br+1}], v{41+t} offset:{p*2048}")
        a("s_waitcnt lgkmcnt(0)")
        for t in range(4):
            br = 84 + t*2; ac = 48 + t*4
            a(f"v_mfma_f32_16x16x16_bf16 v[{ac}:{ac+3}], v[80:81], v[{br}:{br+1}], 0")
        for t in range(4):
            ac = 48 + t*4
            sel_by_group(a, f"v{70+t}", [f"v{ac+k}" for k in range(4)], "v46")
            a(f"global_store_dword v6, v{70+t}, {P_WS} offset:{p*256 + t*64} {stflags}")

VQ, VACC, VBUF = 24, 36, 60
def kreg(d, g, j): return VBUF + d*48 + (g*3+j)*4
def vreg(d, g, j): return VBUF + d*48 + 24 + (g*3+j)*4

def attn_setup(a):
    srd(a, 32, P_K, KV_BYTES); srd(a, 36, P_V, KV_BYTES)
    a("v_lshrrev_b32 v2, 3, v1"); a("v_and_b32 v3, 7, v1"); a("v_mul_u32_u24 v2, 384, v2"); a("v_lshl_add_u32 v10, v3, 4, v2")
    a("s_mul_i32 s52, s28, 1572864")

def stage_off(a, sid, dst):
    a(f"s_lshr_b32 s40, {sid}, 8"); a("s_mul_i32 s40, s40, 50331648")
    a(f"s_and_b32 s41, {sid}, 255"); a("s_mul_i32 s41, s41, 6144")
    a(f"s_add_u32 {dst}, s40, s41"); a(f"s_add_u32 {dst}, {dst}, s52")

def stage_loads(a, d, soff, flags="nt"):
    for g in range(2):
        for j in range(3):
            r = kreg(d,g,j); a(f"buffer_load_dwordx4 v[{r}:{r+3}], v10, s[32:35], {soff} offen offset:{g*3072+j*128} {flags}")
    for g in range(2):
        for j in range(3):
            r = vreg(d,g,j); a(f"buffer_load_dwordx4 v[{r}:{r+3}], v10, s[36:39], {soff} offen offset:{g*3072+j*128} {flags}")

def state_reset(a):
    a("v_mov_b32 v11, 0xff7fffff"); a("v_mov_b32 v12, 0")
    for k in range(24): a(f"v_mov_b32 v{VACC+k}, 0")

def q_frag_load(a, bs):
    a(f"s_mul_i32 s40, {bs}, 384"); a(f"s_add_u32 s40, s40, {QT}")
    a("v_and_b32 v2, 7, v1"); a("v_lshl_add_u32 v2, v2, 4, s40")
    for j in range(3): a(f"ds_read_b128 v[{VQ+4*j}:{VQ+4*j+3}], v2 offset:{j*128}")

def stage_compute(a, d):
    a("v_mov_b32 v13, 0"); a("v_mov_b32 v14, 0")
    for j in range(3):
        for i in range(4):
            a(f"v_dot2c_f32_bf16 v13, v{kreg(d,0,j)+i}, v{VQ+4*j+i}")
            a(f"v_dot2c_f32_bf16 v14, v{kreg(d,1,j)+i}, v{VQ+4*j+i}")
    for dp in ("quad_perm:[1,0,3,2]","quad_perm:[2,3,0,1]","row_half_mirror"):
        a(f"v_add_f32_dpp v13, v13, v13 {dp} {DPPM}"); a(f"v_add_f32_dpp v14, v14, v14 {dp} {DPPM}")
    a("v_cvt_pk_bf16_f32 v15, v13, v14")
    a("v_lshlrev_b32 v13, 16, v15"); a("v_and_b32 v14, 0xffff0000, v15")
    a(f"v_mul_f32 v13, {SCALE:#x}, v13"); a(f"v_mul_f32 v14, {SCALE:#x}, v14")
    a("v_cvt_pk_bf16_f32 v15, v13, v14")
    a("v_lshlrev_b32 v13, 16, v15"); a("v_and_b32 v14, 0xffff0000, v15")
    a(f"v_mul_f32 v13, {LOG2E:#x}, v13"); a(f"v_mul_f32 v14, {LOG2E:#x}, v14")
    a("v_max3_f32 v16, v11, v13, v14")
    a("v_sub_f32 v18, v11, v16"); a("v_sub_f32 v13, v13, v16"); a("v_sub_f32 v14, v14, v16")
    a("v_exp_f32 v18, v18"); a("v_exp_f32 v13, v13"); a("v_exp_f32 v14, v14")
    a("v_mov_b32 v11, v16")
    a("v_fma_f32 v12, v12, v18, v13"); a("v_cvt_pk_bf16_f32 v15, v13, v14"); a("v_add_f32 v12, v12, v14")
    a("v_and_b32 v20, 0xffff, v15"); a("v_lshlrev_b32 v21, 16, v15")
    a("v_lshrrev_b32 v22, 16, v15"); a("v_and_b32 v23, 0xffff0000, v15")
    for k in range(12):
        a(f"v_pk_mul_f32 v[{VACC+2*k}:{VACC+2*k+1}], v[{VACC+2*k}:{VACC+2*k+1}], v[18:19] op_sel_hi:[1,0]")
    for g in range(2):
        for j in range(3):
            for i in range(4):
                a(f"v_dot2c_f32_bf16 v{VACC+8*j+2*i}, v{vreg(d,g,j)+i}, v{20+2*g}")
                a(f"v_dot2c_f32_bf16 v{VACC+8*j+2*i+1}, v{vreg(d,g,j)+i}, v{21+2*g}")

def flush(a, bs):
    a("v_mov_b32 v16, v11")
    a(f"v_max_f32_dpp v16, v16, v16 row_ror:8 {DPPM}")
    a("v_mov_b32 v17, v16"); a("v_permlane16_swap_b32 v16, v17"); a("v_max_f32 v16, v16, v17")
    a("v_mov_b32 v17, v16"); a("v_permlane32_swap_b32 v16, v17"); a("v_max_f32 v16, v16, v17")
    a("v_sub_f32 v18, v11, v16"); a("v_exp_f32 v18, v18")
    a("v_mul_f32 v12, v12, v18")
    for k in range(12):
        a(f"v_pk_mul_f32 v[{VACC+2*k}:{VACC+2*k+1}], v[{VACC+2*k}:{VACC+2*k+1}], v[18:19] op_sel_hi:[1,0]")
    a(f"v_add_f32_dpp v12, v12, v12 row_ror:8 {DPPM}")
    a("v_mov_b32 v17, v12"); a("v_permlane16_swap_b32 v12, v17"); a("v_add_f32 v12, v12, v17")
    a("v_mov_b32 v17, v12"); a("v_permlane32_swap_b32 v12, v17"); a("v_add_f32 v12, v12, v17")
    for i in range(12): a(f"v_permlane32_swap_b32 v{VACC+i}, v{VACC+i+12}")
    for i in range(12): a(f"v_add_f32 v{VACC+i}, v{VACC+i}, v{VACC+i+12}")
    for i in range(6): a(f"v_permlane16_swap_b32 v{VACC+i}, v{VACC+i+6}")
    for i in range(6): a(f"v_add_f32 v{VACC+i}, v{VACC+i}, v{VACC+i+6}")
    for i in range(6): a(f"v_add_f32_dpp v{VACC+i}, v{VACC+i}, v{VACC+i} row_ror:8 {DPPM}")
    a(f"s_lshl_b32 s40, {bs}, 2"); a("s_add_u32 s40, s40, s31"); a(f"s_mul_i32 s40, s40, {FLS}"); a(f"s_add_u32 s40, s40, {FL}")
    a("v_lshrrev_b32 v2, 4, v1"); a("v_mul_u32_u24 v2, 192, v2"); a("v_and_b32 v3, 7, v1"); a("v_lshl_add_u32 v2, v3, 2, v2"); a("v_add_u32 v2, s40, v2")
    for i in range(6): a(f"ds_write_b32 v2, v{VACC+i} offset:{i*32}")
    a("v_mov_b32 v3, s40"); a("v_mov_b32 v17, v12")
    a("ds_write_b64 v3, v[16:17] offset:768")

def wg_merge_publish(a, blist, stflags=""):
    a("v_cmp_gt_u32 vcc, 192, v0"); a("s_and_saveexec_b64 s[46:47], vcc"); a("s_cbranch_execz L_wm_end")
    a("v_lshlrev_b32 v2, 2, v0")
    a(f"v_mov_b32 v3, {FL}")
    a("s_lshl_b32 s40, s28, 5"); a("s_add_u32 s40, s40, s29"); a("s_lshl_b32 s40, s40, 10"); a(f"s_add_u32 s40, s40, {WS_AP}")
    a("v_add_u32 v4, s40, v2")
    for b in blist:
        for w in range(4):
            o = FL + (b*4+w)*FLS
            a(f"ds_read_b32 v{10+w}, v2 offset:{o}"); a(f"ds_read_b64 v[{14+2*w}:{15+2*w}], v3 offset:{o-FL+768}")
        a("s_waitcnt lgkmcnt(0)")
        a("v_max_f32 v22, v14, v16"); a("v_max3_f32 v22, v22, v18, v20")
        for w in range(4):
            a(f"v_sub_f32 v{14+2*w}, v{14+2*w}, v22"); a(f"v_exp_f32 v{14+2*w}, v{14+2*w}")
        a("v_mul_f32 v24, v10, v14"); a("v_mul_f32 v23, v15, v14")
        for w in range(1,4):
            a(f"v_fmac_f32 v24, v{10+w}, v{14+2*w}"); a(f"v_fmac_f32 v23, v{15+2*w}, v{14+2*w}")
        a(f"v_add_u32 v5, {b*8192}, v4")
        a(f"global_store_dword v5, v24, {P_WS} {stflags}")
        a("v_cmp_eq_u32 vcc, 0, v0"); a("s_and_saveexec_b64 s[48:49], vcc")
        a(f"global_store_dwordx2 v5, v[22:23], {P_WS} offset:768 {stflags}")
        a("s_mov_b64 exec, s[48:49]")
    a.label("L_wm_end"); a("s_mov_b64 exec, s[46:47]")
```

```python
import sys
from comp import *

def k1():
    a = Asm(); kernel_header(a, "prep_kernel")
    a("s_cmp_ge_u32 s2, 256"); a("s_cbranch_scc1 K1_end")
    load_args(a); lane_setup(a); ids(a)
    a("s_waitcnt lgkmcnt(0)")
    a("s_cmp_lt_u32 s30, 6"); a("s_cbranch_scc1 K1_q")
    a("s_cmp_eq_u32 s30, 6"); a("s_cbranch_scc1 K1_end")
    a("s_cmp_ge_u32 s28, 24"); a("s_cbranch_scc1 K1_end")
    ln_issue(a); ffn_issue0(a)
    a(f"v_mov_b32 v2, {CTR}"); a("v_mov_b32 v3, 0"); a("ds_write_b32 v2, v3")
    a("s_waitcnt vmcnt(24)"); ln_compute(a)
    a("s_waitcnt lgkmcnt(0)"); a("s_barrier")
    ffn_rest(a, "f")
    a("s_endpgm")
    a.label("K1_q")
    ln_issue(a); q_issue(a)
    a("s_waitcnt vmcnt(10)"); ln_compute(a)
    a("s_waitcnt vmcnt(0) lgkmcnt(0)"); a("s_barrier")
    q_compute(a); q_store(a)
    a.label("K1_end"); a("s_endpgm")
    return a.finalize(), kernel_desc("prep_kernel", 160)

def k2(D=2):
    a = Asm(); kernel_header(a, "attn_kernel")
    a("s_cmp_ge_u32 s2, 256"); a("s_cbranch_scc1 K2_end")
    load_args(a); lane_setup(a); ids(a)
    a("s_waitcnt lgkmcnt(0)")
    attn_setup(a)
    a("s_lshl_b32 s53, s29, 2"); a("s_add_u32 s53, s53, s31")
    for d in range(D):
        stage_off(a, "s53", "s54"); stage_loads(a, d, "s54"); a("s_add_u32 s53, s53, 32")
    a("v_cmp_gt_u32 vcc, 192, v0"); a("s_and_saveexec_b64 s[46:47], vcc"); a("s_cbranch_execz K2_qg")
    a("s_mul_i32 s40, s28, 6144"); a(f"s_add_u32 s40, s40, {WS_QP}"); a("v_lshl_add_u32 v2, v0, 2, s40")
    for b in range(4):
        a(f"global_load_dword v{12+2*b}, v2, {P_WS} offset:{b*768}"); a(f"global_load_dword v{13+2*b}, v2, {P_WS} offset:{3072+b*768-4096}") if False else None
    a("v_add_u32 v3, 3072, v2")
    for b in range(4): a(f"global_load_dword v{13+2*b}, v3, {P_WS} offset:{b*768}")
    a("s_waitcnt vmcnt(0)")
    a("v_lshlrev_b32 v4, 1, v0")
    for b in range(4):
        a(f"v_add_f32 v{12+2*b}, v{12+2*b}, v{13+2*b}"); a(f"v_cvt_pk_bf16_f32 v{12+2*b}, v{12+2*b}, v{12+2*b}")
        a(f"ds_write_b16 v4, v{12+2*b} offset:{QT+b*384}")
    a.label("K2_qg"); a("s_mov_b64 exec, s[46:47]")
    a("s_waitcnt lgkmcnt(0)"); a("s_barrier")
    a("s_mov_b32 s55, 0")
    a.label("K2_b")
    q_frag_load(a, "s55"); state_reset(a); a("s_waitcnt lgkmcnt(0)")
    a(f"s_mov_b32 s56, {8//D}")
    a.label("K2_loop")
    for d in range(D):
        a(f"s_waitcnt vmcnt({12*(D-1)})")
        stage_compute(a, d)
        stage_off(a, "s53", "s54"); a("s_cmp_lt_u32 s53, 1024"); a(f"s_cselect_b32 s34, {KV_BYTES}, 0"); a(f"s_cselect_b32 s38, {KV_BYTES}, 0")
        a("s_cselect_b32 s54, s54, 0")
        stage_loads(a, d, "s54"); a("s_add_u32 s53, s53, 32")
    a("s_sub_u32 s56, s56, 1"); a("s_cmp_lg_u32 s56, 0"); a("s_cbranch_scc1 K2_loop")
    flush(a, "s55")
    a("s_add_u32 s55, s55, 1"); a("s_cmp_lt_u32 s55, 4"); a("s_cbranch_scc1 K2_b")
    a("s_waitcnt vmcnt(0) lgkmcnt(0)"); a("s_barrier")
    wg_merge_publish(a, range(4))
    a.label("K2_end"); a("s_endpgm")
    return a.finalize(), kernel_desc("attn_kernel", VBUF + 48*D)

def k3():
    a = Asm(); kernel_header(a, "proj_kernel")
    a("s_cmp_ge_u32 s2, 256"); a("s_cbranch_scc1 K3_end")
    load_args(a); lane_setup(a); ids(a)
    a("s_waitcnt lgkmcnt(0)")
    a("s_cmp_ge_u32 s30, 5"); a("s_cbranch_scc1 K3_end")
    srd(a, 36, P_WO, H*DH*D*2)
    dma_voff(a, "v40", D*2)
    a(f"s_mul_i32 s44, s28, {192*D*2}"); a("s_lshl_b32 s45, s30, 8"); a("s_add_u32 s44, s44, s45")
    a(f"s_mul_i32 s45, s31, {8*D*2}"); a("s_add_u32 s44, s44, s45")
    a("s_lshl_b32 s45, s31, 10"); a(f"s_add_u32 s45, s45, {PAN}")
    for p in range(2):
        for i in range(6):
            a(f"s_add_u32 s46, s44, {p*128 + i*4*8*D*2}"); a(f"s_add_u32 s47, s45, {p*24576 + i*4096}")
            dma(a, "v40", 36, "s46", "s47", "nt")
    a("v_cmp_gt_u32 vcc, 192, v0"); a("s_and_saveexec_b64 s[48:49], vcc"); a("s_cbranch_execz K3_g")
    a("s_lshl_b32 s40, s28, 15"); a(f"s_add_u32 s40, s40, {WS_AP}")
    a("v_lshl_add_u32 v2, v0, 2, s40"); a("v_mov_b32 v3, s40")
    a("v_lshrrev_b32 v4, 3, v0"); a("v_and_b32 v5, 7, v0"); a("v_lshrrev_b32 v6, 3, v4"); a("v_lshlrev_b32 v6, 6, v6")
    a("v_lshl_add_u32 v6, v5, 3, v6"); a("v_and_b32 v4, 7, v4"); a("v_add_u32 v6, v6, v4"); a("v_lshlrev_b32 v6, 1, v6")
    for b in range(4):
        for j in range(8):
            a(f"v_add_u32 v7, {b*8192 + j*1024}, v2"); a(f"global_load_dword v{10+j}, v7, {P_WS}")
            a(f"v_add_u32 v7, {b*8192 + j*1024 + 768}, v3"); a(f"global_load_dwordx2 v[{20+2*j}:{21+2*j}], v7, {P_WS}")
        a("s_waitcnt vmcnt(0)")
        a("v_max3_f32 v36, v20, v22, v24"); a("v_max3_f32 v36, v36, v26, v28"); a("v_max3_f32 v36, v36, v30, v32"); a("v_max_f32 v36, v36, v34")
        for j in range(8):
            a(f"v_sub_f32 v{20+2*j}, v{20+2*j}, v36"); a(f"v_exp_f32 v{20+2*j}, v{20+2*j}")
        a("v_mul_f32 v37, v10, v20"); a("v_mul_f32 v38, v21, v20")
        for j in range(1,8):
            a(f"v_fmac_f32 v37, v{10+j}, v{20+2*j}"); a(f"v_fmac_f32 v38, v{21+2*j}, v{20+2*j}")
        a("v_rcp_f32 v39, v38"); a("v_mul_f32 v9, v37, v39")
        a("v_fma_f32 v8, -v9, v38, v37"); a("v_fma_f32 v9, v8, v39, v9")
        a("v_cvt_pk_bf16_f32 v9, v9, v9")
        a(f"ds_write_b16 v6, v9 offset:{OT+b*OS}")
    a.label("K3_g"); a("s_mov_b64 exec, s[48:49]")
    a("s_waitcnt vmcnt(0) lgkmcnt(0)"); a("s_barrier")
    bfrag_addr(a, "v41", "s31"); a(f"v_add_u32 v41, {PAN}, v41")
    afrag_addr(a, "v45", OS); a(f"v_add_u32 v45, {OT}, v45")
    a("v_lshrrev_b32 v46, 4, v1")
    a("s_lshl_b32 s40, s30, 7"); a("s_add_u32 s40, s40, s28"); a("s_lshl_b32 s40, s40, 9"); a("s_lshl_b32 s41, s31, 6"); a("s_add_u32 s40, s40, s41"); a(f"s_add_u32 s40, s40, {WS_Y}")
    a("v_lshlrev_b32 v6, 14, v46"); a("v_and_b32 v3, 15, v1"); a("v_lshl_add_u32 v6, v3, 2, v6"); a("v_add_u32 v6, s40, v6")
    for s in range(6):
        ar = 60+4*s
        a(f"ds_read_b64 v[{ar}:{ar+1}], v45 offset:{s*64}"); a(f"ds_read_b64 v[{ar+2}:{ar+3}], v45 offset:{s*64+32}")
    for p in range(2):
        for s in range(6):
            br = 84+4*s
            a(f"ds_read_b64_tr_b16 v[{br}:{br+1}], v41 offset:{p*24576 + s*4096}"); a(f"ds_read_b64_tr_b16 v[{br+2}:{br+3}], v41 offset:{p*24576 + s*4096+2048}")
        a("s_waitcnt lgkmcnt(0)")
        for s in range(6):
            ar, br = 60+4*s, 84+4*s
            a(f"v_mfma_f32_16x16x32_bf16 v[48:51], v[{ar}:{ar+3}], v[{br}:{br+3}], {'0' if s==0 else 'v[48:51]'}")
        sel_by_group(a, "v52", ["v48","v49","v50","v51"], "v46")
        a(f"global_store_dword v6, v52, {P_WS} offset:{p*256}")
    a.label("K3_end"); a("s_endpgm")
    return a.finalize(), kernel_desc("proj_kernel", 128)

def red16(a, vals, tmp):
    for v in vals: a(f"v_add_f32_dpp {v}, {v}, {v} row_ror:8 {DPPM}")
    for v in vals: a(f"v_add_f32_dpp {v}, {v}, {v} row_ror:4 {DPPM}")
    for sw in ("v_permlane16_swap_b32","v_permlane32_swap_b32"):
        for v in vals:
            a(f"v_mov_b32 {tmp}, {v}"); a(f"{sw} {v}, {tmp}"); a(f"v_add_f32 {v}, {v}, {tmp}")

def k4():
    a = Asm(); kernel_header(a, "final_kernel")
    a("s_cmp_ge_u32 s2, 256"); a("s_cbranch_scc1 K4_end")
    load_args(a); lane_setup(a); ids(a)
    a("s_waitcnt lgkmcnt(0)")
    a("s_cmp_ge_u32 s30, 5"); a("s_cbranch_scc1 K4_end")
    a("s_cmp_lg_u32 s31, 0"); a("s_cbranch_scc1 K4_end")
    a("s_lshr_b32 s41, s28, 3"); a("s_and_b32 s42, s28, 7")
    a("s_lshl_b32 s43, s30, 7"); a("s_lshl_b32 s44, s42, 4"); a("s_add_u32 s43, s43, s44")
    a("v_lshrrev_b32 v2, 2, v1"); a("v_and_b32 v3, 3, v1")
    a("s_lshl_b32 s40, s30, 2"); a("s_add_u32 s40, s40, s41"); a("s_lshl_b32 s40, s40, 14"); a("s_lshl_b32 s44, s42, 6"); a("s_add_u32 s40, s40, s44"); a(f"s_add_u32 s40, s40, {WS_Y}")
    a("v_lshlrev_b32 v4, 9, v2"); a("v_lshl_add_u32 v4, v3, 4, v4"); a("v_add_u32 v4, s40, v4")
    a(f"global_load_dwordx4 v[8:11], v4, {P_WS}"); a("v_add_u32 v5, 8192, v4"); a(f"global_load_dwordx4 v[12:15], v5, {P_WS}")
    a("s_mul_i32 s40, s41, 245760"); a("s_lshl_b32 s44, s43, 2"); a("s_add_u32 s40, s40, s44"); a(f"s_add_u32 s40, s40, {WS_GP}")
    a("v_mul_u32_u24 v4, 2560, v2"); a("v_lshl_add_u32 v4, v3, 4, v4"); a("v_add_u32 v4, s40, v4")
    for i in range(6):
        a(f"global_load_dwordx4 v[{16+4*i}:{19+4*i}], v4, {P_WS}")
        if i < 5: a("v_add_u32 v4, 40960, v4")
    a("s_mul_i32 s40, s41, 1280"); a("s_lshl_b32 s44, s43, 1"); a("s_add_u32 s40, s40, s44"); a("v_lshl_add_u32 v6, v3, 3, s40")
    a(f"global_load_dwordx2 v[40:41], v6, {P_X}")
    a("s_waitcnt vmcnt(0)")
    for k in range(4): a(f"v_add_f32 v{8+k}, v{8+k}, v{12+k}")
    for i in range(1,6):
        for k in range(4): a(f"v_add_f32 v{16+k}, v{16+k}, v{16+4*i+k}")
    red16(a, [f"v{8+k}" for k in range(4)] + [f"v{16+k}" for k in range(4)], "v7")
    a("v_lshlrev_b32 v44, 16, v40"); a("v_and_b32 v45, 0xffff0000, v40"); a("v_lshlrev_b32 v46, 16, v41"); a("v_and_b32 v47, 0xffff0000, v41")
    for k in range(4):
        s, g = f"v{8+k}", f"v{16+k}"
        bf16r(a, s, s); bf16r(a, g, g)
        a(f"v_mul_f32 v20, 0xbfb8aa3b, {g}"); a("v_exp_f32 v20, v20"); a("v_add_f32 v20, 1.0, v20"); a("v_rcp_f32 v21, v20")
        a(f"v_mul_f32 v22, {g}, v21"); a(f"v_fma_f32 v23, -v22, v20, {g}"); a("v_fma_f32 v22, v23, v21, v22")
        a(f"v_mul_f32 v23, {g}, v21"); a("v_cmp_u_f32 vcc, v22, v22"); a("v_cndmask_b32 v22, v22, v23, vcc")
        bf16r(a, "v22", "v22")
        a(f"v_mul_f32 v22, {s}, v22"); bf16r(a, "v22", "v22")
        a(f"v_add_f32 v{48+k}, v{44+k}, v22")
    a("v_cvt_pk_bf16_f32 v52, v48, v49"); a("v_cvt_pk_bf16_f32 v53, v50, v51")
    a("v_cmp_gt_u32 vcc, 4, v1"); a("s_and_saveexec_b64 s[46:47], vcc")
    a(f"global_store_dwordx2 v6, v[52:53], {P_OUT}")
    a.label("K4_end"); a("s_endpgm")
    return a.finalize(), kernel_desc("final_kernel", 64)

def build(path, D=2):
    hdr = [f"; @launch kernel=prep_kernel grid=(256,1,1) block=(256,1,1) lds={PAN+4*RING}",
           f"; @launch kernel=attn_kernel grid=(256,1,1) block=(256,1,1) lds={PAN}",
           f"; @launch kernel=proj_kernel grid=(256,1,1) block=(256,1,1) lds={PAN+49152}",
           f"; @launch kernel=final_kernel grid=(256,1,1) block=(64,1,1) lds=0",
           '.amdgcn_target "amdgcn-amd-amdhsa--gfx950"', ".text"]
    ks = [k1(), k2(D), k3(), k4()]
    txt = "\n".join(hdr) + "\n" + "".join(k[0] for k in ks) + '.section .rodata,"a"\n' + "".join(".p2align 6\n" + k[1] + "\n" for k in ks)
    open(path, "w").write(txt)
if __name__ == "__main__":
    build("v1.s")
    import build as bld
    bld.build("v1.s")
    print("ok")
```

```python
import sys
from comp import *

W_EPOCH = 0x000000
W_CNT   = 0x001000
W_QP    = 0x010000
W_AP    = 0x070000
W_Y     = 0x0B0000
W_HP    = 0x100000
W_G2    = 0x108000
import os
if os.environ.get("OLDLAYOUT"):
    W_AP, W_Y, W_HP, W_G2 = 0x100000, 0x200000, 0x300000, 0x310000
W_STAMP = 0x600000
L_XN  = 0
L_CTR = 5376
L_QT  = 5440
L_OT  = 5888
L_FL  = 7680
L_RED = 11264
L_HT  = 11264
HTS   = 1040
L_PAN = 20480
RING3 = 24576
LDS_BYTES = L_PAN + 4*RING3
AUXC = L_CTR; FLC = L_CTR + 16; XCF = L_CTR + 20
ST, ST2 = "s60", "s61"
SMASK = "s57"
VTAG = "v159"
SPIN = 0x8000
import comp
comp.XN = L_XN; comp.PAN = L_PAN

def stage_compute1(a, d):
    a("v_mov_b32 v13, 0"); a("v_mov_b32 v14, 0")
    k = 0
    for j in range(3):
        for i in range(4):
            a(f"v_dot2c_f32_bf16 v{13+(k&1)}, v{kreg(d,0,j)+i}, v{VQ+4*j+i}"); k += 1
    a("v_add_f32 v13, v13, v14")
    for dp in ("quad_perm:[1,0,3,2]","quad_perm:[2,3,0,1]","row_half_mirror"):
        a(f"v_add_f32_dpp v13, v13, v13 {dp} {DPPM}")
    bf16r(a, "v13", "v13"); a(f"v_mul_f32 v13, {SCALE:#x}, v13"); bf16r(a, "v13", "v13"); a(f"v_mul_f32 v13, {LOG2E:#x}, v13")
    a("v_max_f32 v16, v11, v13")
    a("v_sub_f32 v18, v11, v16"); a("v_sub_f32 v13, v13, v16")
    a("v_exp_f32 v18, v18"); a("v_exp_f32 v13, v13")
    a("v_mov_b32 v11, v16")
    a("v_fma_f32 v12, v12, v18, v13"); a("v_cvt_pk_bf16_f32 v15, v13, v13")
    a("v_and_b32 v20, 0xffff, v15"); a("v_and_b32 v21, 0xffff0000, v15")
    for k in range(12):
        a(f"v_pk_mul_f32 v[{VACC+2*k}:{VACC+2*k+1}], v[{VACC+2*k}:{VACC+2*k+1}], v[18:19] op_sel_hi:[1,0]")
    for j in range(3):
        for i in range(4):
            a(f"v_dot2c_f32_bf16 v{VACC+8*j+2*i}, v{vreg(d,0,j)+i}, v20")
            a(f"v_dot2c_f32_bf16 v{VACC+8*j+2*i+1}, v{vreg(d,0,j)+i}, v21")
def stage_loads1(a, d, soff, flags="nt"):
    for j in range(3):
        r = kreg(d,0,j); a(f"buffer_load_dwordx4 v[{r}:{r+3}], v10, s[32:35], {soff} offen offset:{j*128} {flags}")
    for j in range(3):
        r = vreg(d,0,j); a(f"buffer_load_dwordx4 v[{r}:{r+3}], v10, s[36:39], {soff} offen offset:{j*128} {flags}")

DOC = """
;     either as {d0,T,d1,~T} granules or in the low 8..10 mantissa bits of every value; one workgroup stores T back to word 0
"""

def stage_compute_u(a, d):
    a("v_mov_b32 v13, 0"); a("v_mov_b32 v14, 0")
    for j in range(3):
        for i in range(4):
            a(f"v_dot2c_f32_bf16 v13, v{kreg(d,0,j)+i}, v{VQ+4*j+i}")
            a(f"v_dot2c_f32_bf16 v14, v{kreg(d,1,j)+i}, v{VQ+4*j+i}")
    for dp in ("quad_perm:[1,0,3,2]","quad_perm:[2,3,0,1]","row_half_mirror"):
        a(f"v_add_f32_dpp v13, v13, v13 {dp} {DPPM}"); a(f"v_add_f32_dpp v14, v14, v14 {dp} {DPPM}")
    a("v_cvt_pk_bf16_f32 v15, v13, v14")
    a("v_lshlrev_b32 v13, 16, v15"); a("v_and_b32 v14, 0xffff0000, v15")
    a(f"v_mul_f32 v13, {SCALE:#x}, v13"); a(f"v_mul_f32 v14, {SCALE:#x}, v14")
    a("v_cvt_pk_bf16_f32 v15, v13, v14")
    a("v_lshlrev_b32 v13, 16, v15"); a("v_and_b32 v14, 0xffff0000, v15")
    a(f"v_mul_f32 v13, {LOG2E:#x}, v13"); a(f"v_mul_f32 v14, {LOG2E:#x}, v14")
    a("v_max3_f32 v16, v11, v13, v14")
    a(f"v_max_f32_dpp v16, v16, v16 row_ror:8 {DPPM}")
    a("v_mov_b32 v17, v16"); a("v_permlane16_swap_b32 v16, v17"); a("v_max_f32 v16, v16, v17")
    a("v_mov_b32 v17, v16"); a("v_permlane32_swap_b32 v16, v17"); a("v_max_f32 v16, v16, v17")
    a("v_sub_f32 v18, v11, v16"); a("v_sub_f32 v13, v13, v16"); a("v_sub_f32 v14, v14, v16")
    a("v_exp_f32 v18, v18"); a("v_exp_f32 v13, v13"); a("v_exp_f32 v14, v14")
    a("v_mov_b32 v11, v16")
    a("v_fma_f32 v12, v12, v18, v13"); a("v_cvt_pk_bf16_f32 v15, v13, v14"); a("v_add_f32 v12, v12, v14")
    a("v_and_b32 v20, 0xffff, v15"); a("v_lshlrev_b32 v21, 16, v15")
    a("v_lshrrev_b32 v22, 16, v15"); a("v_and_b32 v23, 0xffff0000, v15")
    for k in range(12):
        a(f"v_pk_mul_f32 v[{VACC+2*k}:{VACC+2*k+1}], v[{VACC+2*k}:{VACC+2*k+1}], v[18:19] op_sel_hi:[1,0]")
    for g in range(2):
        for j in range(3):
            for i in range(4):
                a(f"v_dot2c_f32_bf16 v{VACC+8*j+2*i}, v{vreg(d,g,j)+i}, v{20+2*g}")
                a(f"v_dot2c_f32_bf16 v{VACC+8*j+2*i+1}, v{vreg(d,g,j)+i}, v{21+2*g}")

class G:
    def __init__(s, S=28, stamps=False, dyn=True, pair=3, pace=2, cap=2, prio=True, **x):
        s.a = Asm(); s.S = S; s.stamps = stamps; s.dyn = dyn; s.pair = pair; s.pace = pace; s.cap = cap; s.prio = prio; s.uid = 0; s.x = x
    def opt(s, k, d=None): return s.x.get(k, d)
    def lab(s, base):
        s.uid += 1; return f"L_{base}_{s.uid}"
    def stamp(s, k, tail=False):
        ts = s.opt("tailst")
        if s.stamps and ((not ts) or tail or k == 0 or not getattr(s, "in_aux", False)): s.a(f"s_memrealtime s[{62+2*k}:{63+2*k}]")
    def dstamp(s, k, inv=False):
        if not s.opt("dbgst"): return
        a = s.a
        a("s_memrealtime s[94:95]"); a("s_waitcnt lgkmcnt(0)")
        if inv: a("s_not_b32 s94, s94")
        a("v_mov_b32 v2, %d" % (4*k)); a("v_mov_b32 v3, s94")
        a("s_mov_b64 s[86:87], exec"); a("s_mov_b64 exec, 1"); a(f"global_atomic_umax v2, v3, {P_DBG}"); a("s_mov_b64 exec, s[86:87]")
    def write_stamps(s):
        if not s.stamps: return
        a = s.a
        a("s_waitcnt lgkmcnt(0)")
        a("v_lshrrev_b32 v2, 6, v0"); a("v_readfirstlane_b32 s40, v2")
        a("s_lshl_b32 s41, s2, 4"); a("s_add_u32 s41, s41, s40"); a("s_lshl_b32 s41, s41, 6"); a(f"s_add_u32 s41, s41, {W_STAMP}")
        if s.opt("tailst"): a("s_memrealtime s[76:77]"); a("s_waitcnt lgkmcnt(0)")
        else: a("s_getreg_b32 s76, hwreg(HW_REG_XCC_ID, 0, 4)"); a("s_mov_b32 s77, 0")
        a("v_mov_b32 v2, s41")
        a("s_mov_b64 exec, 1")
        for k in range(4):
            for i in range(4): a(f"v_mov_b32 v{4+i}, s{62+4*k+i}")
            a(f"global_store_dwordx4 v2, v[4:7], {P_WS} offset:{16*k}")
            a("s_nop 1")
    def err(s, code):
        a = s.a
        a(f"v_mov_b32 v2, {4*code}"); a("v_mov_b32 v3, 1"); a(f"global_store_dword v2, v3, {P_DBG}")
    def auxbar(s, sleep=0):
        a = s.a
        a("s_waitcnt lgkmcnt(0)")
        a("s_add_u32 s58, s58, 4")
        a(f"v_mov_b32 v2, {AUXC}"); a("v_mov_b32 v3, 1")
        a("s_mov_b64 exec, 1"); a("ds_add_u32 v2, v3"); a("s_mov_b64 exec, -1")
        a(f"s_mov_b32 s79, {SPIN*16}")
        l = s.lab("ab"); x = s.lab("abx")
        a.label(l)
        a("ds_read_b32 v4, v2"); a("s_waitcnt lgkmcnt(0)"); a("v_readfirstlane_b32 s78, v4")
        a("s_cmp_ge_u32 s78, s58"); a(f"s_cbranch_scc1 {x}")
        if sleep: a(f"s_sleep {sleep}")
        a("s_sub_u32 s79, s79, 1"); a(f"s_cbranch_scc0 {l}")
        s.err(1)
        a.label(x)
    def poll_begin(s):
        l = s.lab("poll"); s.a(f"s_mov_b32 s79, {SPIN}"); s.a.label(l); return l
    def check(s, grans):
        a = s.a
        for k, r in enumerate(grans):
            a(f"v_xor_b32 v7, {ST}, v{r+1}"); a(f"v_xor_b32 v8, {ST2}, v{r+3}")
            if k == 0: a("v_or_b32 v9, v7, v8")
            else: a("v_or3_b32 v9, v9, v7, v8")
    def poll_end(s, l, code, sleep=1):
        a = s.a; x = s.lab("pollx")
        a("v_cmp_ne_u32 vcc, 0, v9"); a("s_cmp_lg_u64 vcc, 0"); a(f"s_cbranch_scc0 {x}")
        if sleep: a(f"s_sleep {sleep}")
        a("s_sub_u32 s79, s79, 1"); a(f"s_cbranch_scc0 {l}")
        s.err(code)
        a.label(x)
    def gran(s, r, d0, d1):
        a = s.a
        a(f"v_mov_b32 v{r}, {d0}"); a(f"v_mov_b32 v{r+1}, {ST}"); a(f"v_mov_b32 v{r+2}, {d1}"); a(f"v_mov_b32 v{r+3}, {ST2}")
    def tag_setup(s):
        a = s.a
        a(f"s_add_u32 {ST}, s60, 1"); a(f"s_not_b32 {ST2}, {ST}")
        a(f"s_mov_b32 {SMASK}, 0x3ff"); a(f"v_mov_b32 {VTAG}, {ST}")
    def enc(s, dst, src):
        a = s.a
        a(f"v_add_u32 {dst}, 0x200, {src}"); a(f"v_bfi_b32 {dst}, {SMASK}, {VTAG}, {dst}")
    def cchk(s, regs):
        a = s.a; regs = list(regs)
        a(f"v_xor_b32 v9, {VTAG}, v{regs[0]}")
        rest = regs[1:]
        while rest:
            if len(rest) >= 2:
                a(f"v_xor_b32 v7, {VTAG}, v{rest[0]}"); a(f"v_xor_b32 v8, {VTAG}, v{rest[1]}"); a("v_or3_b32 v9, v9, v7, v8"); rest = rest[2:]
            else:
                a(f"v_xor_b32 v7, {VTAG}, v{rest[0]}"); a("v_or_b32 v9, v9, v7"); rest = rest[1:]
        a(f"v_and_b32 v9, 0x3ff, v9")
    def dec(s, regs):
        for r in regs: s.a(f"v_and_b32 v{r}, 0xfffffc00, v{r}")
    def pipe_poll(s, loads, nld, nreg, A, Bs, dst, code):
        a = s.a
        l = s.lab("pp"); okA = s.lab("ppA"); okB = s.lab("ppB"); x = s.lab("ppx")
        a(f"s_mov_b32 s79, {SPIN}")
        loads(A)
        a(f"s_sleep {s.opt('stag', 7)}")
        a.label(l)
        loads(Bs); a(f"s_waitcnt vmcnt({nld})")
        s.cchk(range(A, A+nreg)); a("v_cmp_ne_u32 vcc, 0, v9"); a("s_cmp_lg_u64 vcc, 0"); a(f"s_cbranch_scc0 {okA}")
        loads(A); a(f"s_waitcnt vmcnt({nld})")
        s.cchk(range(Bs, Bs+nreg)); a("v_cmp_ne_u32 vcc, 0, v9"); a("s_cmp_lg_u64 vcc, 0"); a(f"s_cbranch_scc0 {okB}")
        a("s_sub_u32 s79, s79, 1"); a(f"s_cbranch_scc0 {l}")
        s.err(code)
        a.label(okB)
        for k in range(nreg): a(f"v_and_b32 v{dst+k}, 0xfffffc00, v{Bs+k}")
        a(f"s_branch {x}")
        a.label(okA)
        for k in range(nreg): a(f"v_and_b32 v{dst+k}, 0xfffffc00, v{A+k}")
        a.label(x)
    def red4(s, vals, tmp):
        a = s.a
        for v in vals: a(f"v_add_f32_dpp {v}, {v}, {v} row_ror:8 {DPPM}")
        for v in vals: a(f"v_add_f32_dpp {v}, {v}, {v} row_ror:4 {DPPM}")
        for sw in ("v_permlane16_swap_b32","v_permlane32_swap_b32"):
            for v in vals:
                a(f"v_mov_b32 {tmp}, {v}"); a(f"{sw} {v}, {tmp}"); a(f"v_add_f32 {v}, {v}, {tmp}")
    def pair_publish(s, val, addr, r=56):
        a = s.a
        a(f"v_mov_b32_dpp v{r-1}, {val} quad_perm:[1,0,3,2] {DPPM}")
        s.gran(r, val, f"v{r-1}")
        a("s_mov_b32 exec_lo, 0x55555555"); a("s_mov_b32 exec_hi, 0x55555555")
        a(f"global_store_dwordx4 {addr}, v[{r}:{r+3}], {P_WS} sc1")
        a("s_mov_b64 exec, -1")
    def red8(s, vals, tmp):
        a = s.a
        for v in vals: a(f"v_add_f32_dpp {v}, {v}, {v} row_ror:8 {DPPM}")
        for sw in ("v_permlane16_swap_b32","v_permlane32_swap_b32"):
            for v in vals:
                a(f"v_mov_b32 {tmp}, {v}"); a(f"{sw} {v}, {tmp}"); a(f"v_add_f32 {v}, {v}, {tmp}")

    def ids3(s):
        a = s.a; ids(a)
        if s.pair == 3:
            a("s_lshr_b32 s40, s29, 1"); a("s_xor_b32 s40, s40, s29"); a("s_and_b32 s40, s40, 1")
            a("s_lshr_b32 s41, s29, 2"); a("s_lshl_b32 s41, s41, 1"); a("s_add_u32 s55, s40, s41"); a("s_and_b32 s59, s29, 1")
        elif s.pair == 5:
            a("s_lshr_b32 s59, s29, 2"); a("s_mul_i32 s40, s59, 5"); a("s_xor_b32 s55, s29, s40")
        elif s.pair == 1:
            a("s_lshr_b32 s55, s29, 1"); a("s_and_b32 s59, s29, 1")
        if s.opt("prole", True):
            a("s_add_u32 s40, s55, s28"); a("s_and_b32 s40, s40, 3"); a("s_lshl_b32 s40, s40, 1")
            if s.opt("evenheavy"): a("s_xor_b32 s41, s59, 1"); a("s_add_u32 s30, s40, s41")
            else: a("s_lshr_b32 s41, s28, 2"); a("s_add_u32 s41, s41, s59"); a("s_and_b32 s41, s41, 1"); a("s_add_u32 s30, s40, s41")

    def q_compute_t(s):
        a = s.a
        bfrag_addr(a, "v41", "s31"); a(f"v_add_u32 v41, {L_PAN}, v41")
        afrag_addr(a, "v45", XS); a("s_lshl_b32 s40, s42, 1"); a(f"s_add_u32 s40, s40, {L_XN}"); a("v_add_u32 v45, s40, v45")
        for st in range(10):
            ar, br = 60+8*st, 64+8*st
            a(f"ds_read_b64 v[{ar}:{ar+1}], v45 offset:{st*64}"); a(f"ds_read_b64 v[{ar+2}:{ar+3}], v45 offset:{st*64+32}")
            a(f"ds_read_b64_tr_b16 v[{br}:{br+1}], v41 offset:{st*4096}"); a(f"ds_read_b64_tr_b16 v[{br+2}:{br+3}], v41 offset:{st*4096+2048}")
        a("s_mul_i32 s44, s28, 6144"); a("s_mul_i32 s45, s41, 3072"); a("s_add_u32 s44, s44, s45")
        a("s_lshl_b32 s45, s43, 8"); a("s_add_u32 s44, s44, s45"); a("s_lshl_b32 s45, s31, 6"); a("s_add_u32 s44, s44, s45"); a(f"s_add_u32 s44, s44, {W_QP}")
        a("v_and_b32 v2, 3, v1"); a("v_mul_u32_u24 v2, 768, v2"); a("v_lshrrev_b32 v3, 4, v1"); a("v_lshl_add_u32 v6, v3, 4, v2"); a("v_add_u32 v6, s44, v6")
        a("s_waitcnt lgkmcnt(0)")
        for st in range(10):
            ar, br = 60+8*st, 64+8*st
            a(f"v_mfma_f32_16x16x32_bf16 v[48:51], v[{br}:{br+3}], v[{ar}:{ar+3}], {'0' if st==0 else 'v[48:51]'}")
        a("s_mov_b32 s40, 0xff")
        for r in range(4):
            a(f"v_add_u32 v{52+r}, 0x80, v{48+r}"); a(f"v_bfi_b32 v{52+r}, s40, {VTAG}, v{52+r}")
        a("s_mov_b32 exec_lo, 0x000f000f"); a("s_mov_b32 exec_hi, 0x000f000f")
        a(f"global_store_dwordx4 v6, v[52:55], {P_WS} sc1")
        a("s_mov_b64 exec, -1")
    def q_gather_c(s):
        a = s.a; e = s.lab("qg")
        a("s_cmp_lg_u32 s31, 0"); a(f"s_cbranch_scc1 {e}")
        a("s_mul_i32 s82, s28, 6144"); a("s_mul_i32 s83, s55, 768"); a("s_add_u32 s82, s82, s83"); a(f"s_add_u32 s82, s82, {W_QP}")
        a("v_lshl_add_u32 v12, v1, 4, s82")
        a("s_mov_b32 exec_hi, 0xffff")
        l = s.poll_begin()
        a(f"global_load_dwordx4 v[16:19], v12, {P_WS} sc1"); a(f"global_load_dwordx4 v[20:23], v12, {P_WS} offset:3072 sc1")
        a("s_waitcnt vmcnt(0)")
        a(f"v_xor_b32 v9, {VTAG}, v16")
        for r in range(17, 24):
            a(f"v_xor_b32 v7, {VTAG}, v{r}"); a("v_or_b32 v9, v9, v7")
        a("v_and_b32 v9, 0xff, v9")
        s.poll_end(l, 2, s.opt("slq", 1))
        for r in range(16, 24): a(f"v_and_b32 v{r}, 0xffffff00, v{r}")
        for r in range(4): a(f"v_add_f32 v{16+r}, v{16+r}, v{20+r}")
        a("v_cvt_pk_bf16_f32 v16, v16, v17"); a("v_cvt_pk_bf16_f32 v17, v18, v19")
        a("v_lshlrev_b32 v12, 3, v1"); a(f"ds_write_b64 v12, v[16:17] offset:{L_QT}")
        a("s_mov_b64 exec, -1")
        a.label(e)
        a("s_waitcnt lgkmcnt(0)")
    def q_publish(s):
        a = s.a
        a("s_mul_i32 s44, s28, 12288"); a("s_mul_i32 s45, s41, 6144"); a("s_add_u32 s44, s44, s45")
        a("s_lshl_b32 s45, s43, 9"); a("s_add_u32 s44, s44, s45"); a("s_lshl_b32 s45, s31, 7"); a("s_add_u32 s44, s44, s45"); a(f"s_add_u32 s44, s44, {W_QP}")
        a("v_mul_u32_u24 v2, 1536, v46"); a("v_and_b32 v3, 14, v1"); a("v_lshl_add_u32 v6, v3, 3, v2"); a("v_add_u32 v6, s44, v6")
        s.pair_publish("v52", "v6")
    def q_gather(s):
        if s.opt("qcompact"): return s.q_gather_c()
        a = s.a; e = s.lab("qg")
        a("v_cmp_gt_u32 vcc, 96, v0"); a("s_and_saveexec_b64 s[80:81], vcc"); a(f"s_cbranch_execz {e}")
        a("s_mul_i32 s82, s28, 12288"); a("s_mul_i32 s83, s55, 1536"); a("s_add_u32 s82, s82, s83"); a(f"s_add_u32 s82, s82, {W_QP}")
        a("v_lshl_add_u32 v12, v0, 4, s82"); a("v_add_u32 v13, 6144, v12")
        nq = s.opt("qpipe", 1)
        if nq == 1:
            l = s.poll_begin()
            a(f"global_load_dwordx4 v[16:19], v12, {P_WS} sc1"); a(f"global_load_dwordx4 v[20:23], v13, {P_WS} sc1")
            a("s_waitcnt vmcnt(0)")
            s.check([16,20]); s.poll_end(l, 2, s.opt("slq", 1))
            a("v_add_f32 v16, v16, v20"); a("v_add_f32 v18, v18, v22")
        else:
            sets = [208 + 8*k for k in range(nq)]
            def ldq(r):
                a(f"global_load_dwordx4 v[{r}:{r+3}], v12, {P_WS} sc1"); a(f"global_load_dwordx4 v[{r+4}:{r+7}], v13, {P_WS} sc1")
            l = s.lab("qp"); x = s.lab("qpx"); oks = [s.lab("qok") for _ in sets]
            a(f"s_mov_b32 s79, {SPIN}")
            for r in sets[:-1]:
                ldq(r); a(f"s_sleep {s.opt('qstag', 8)}")
            a.label(l)
            for k, r in enumerate(sets):
                ldq(sets[(k-1) % nq]); a(f"s_waitcnt vmcnt({2*(nq-1)})")
                s.check([r, r+4]); a("v_cmp_ne_u32 vcc, 0, v9"); a("s_cmp_lg_u64 vcc, 0"); a(f"s_cbranch_scc0 {oks[k]}")
            a("s_sub_u32 s79, s79, 1"); a(f"s_cbranch_scc0 {l}")
            s.err(2)
            for k in reversed(range(nq)):
                r = sets[k]
                a.label(oks[k])
                a(f"v_add_f32 v16, v{r}, v{r+4}"); a(f"v_add_f32 v18, v{r+2}, v{r+6}")
                if k: a(f"s_branch {x}")
            a.label(x)
            a("s_waitcnt vmcnt(0)") if s.opt("qdrain") else None
        a("v_cvt_pk_bf16_f32 v16, v16, v18")
        a("v_lshlrev_b32 v12, 2, v0"); a(f"ds_write_b32 v12, v16 offset:{L_QT}")
        a.label(e); a("s_mov_b64 exec, s[80:81]")
        a("s_waitcnt lgkmcnt(0)")

    WOB = 160
    def wo_load(s):
        a = s.a
        srd(a, 36, P_WO, H*DH*D*2)
        dma_voff(a, "v40", D*2)
        a(f"s_mul_i32 s44, s28, {192*D*2}"); a("s_lshl_b32 s45, s30, 8"); a("s_add_u32 s44, s44, s45")
        a(f"s_mul_i32 s45, s31, {8*D*2}"); a("s_add_u32 s44, s44, s45")
        a("s_lshl_b32 s45, s31, 10"); a(f"s_add_u32 s45, s45, {L_PAN}")
        order = [(p,i) for i in range(6) for p in range(2)] if s.opt("woadj") else [(p,i) for p in range(2) for i in range(6)]
        for p, i in order:
            a(f"s_add_u32 s46, s44, {p*128 + i*4*8*D*2}"); a(f"s_add_u32 s47, s45, {p*24576 + i*4096}")
            dma(a, "v40", 36, "s46", "s47", "nt")
        a("s_waitcnt vmcnt(0)")
        s.auxbar(1)
        bfrag_addr(a, "v41", "s31"); a(f"v_add_u32 v41, {L_PAN}, v41")
        for p in range(2):
            for k in range(6):
                br = s.WOB + p*24 + 4*k
                a(f"ds_read_b64_tr_b16 v[{br}:{br+1}], v41 offset:{p*24576 + k*4096}")
                a(f"ds_read_b64_tr_b16 v[{br+2}:{br+3}], v41 offset:{p*24576 + k*4096+2048}")
        a("s_waitcnt lgkmcnt(0)")

    def ffn1(s):
        a = s.a; flags = "nt"
        srd(a, 36, P_WG, D*F*2); srd(a, 44, P_WU, D*F*2)
        a(f"s_mul_i32 s48, s31, {160*F*2}"); a("s_lshl_b32 s40, s28, 7"); a("s_add_u32 s48, s48, s40")
        a(f"s_mul_i32 s49, s31, {RING3}"); a(f"s_add_u32 s49, s49, {L_PAN}")
        dma_voff(a, "v40", F*2)
        for st in range(3): ffn_issue_step(a, st, flags)
        for t in range(4):
            bfrag_addr(a, f"v{41+t}", t); a(f"v_add_u32 v{41+t}, s49, v{41+t}")
        afrag_addr(a, "v45", XS); a("s_mul_i32 s40, s31, 320"); a(f"s_add_u32 s40, s40, {L_XN}"); a("v_add_u32 v45, s40, v45")
        for k in range(32): a(f"v_mov_b32 v{48+k}, 0")
        for st in range(5):
            out = min(5, st+3) - (st+1)
            a(f"s_waitcnt vmcnt({8*out})")
            a(f"ds_read_b64 v[80:81], v45 offset:{st*64}"); a(f"ds_read_b64 v[82:83], v45 offset:{st*64+32}")
            for m in range(2):
                for t in range(4):
                    br = 84 + (m*4+t)*4; off = (st%3)*8192 + m*4096
                    a(f"ds_read_b64_tr_b16 v[{br}:{br+1}], v{41+t} offset:{off}")
                    a(f"ds_read_b64_tr_b16 v[{br+2}:{br+3}], v{41+t} offset:{off+2048}")
            a("s_waitcnt lgkmcnt(0)")
            if st+3 < 5: ffn_issue_step(a, st+3, flags)
            for m in range(2):
                for t in range(4):
                    br = 84 + (m*4+t)*4; ac = 48 + (m*4+t)*4
                    a(f"v_mfma_f32_16x16x32_bf16 v[{ac}:{ac+3}], v[80:83], v[{br}:{br+3}], v[{ac}:{ac+3}]")
        a("v_lshrrev_b32 v46, 4, v1"); a("v_and_b32 v3, 15, v1"); a("v_lshlrev_b32 v3, 2, v3"); a("v_lshl_add_u32 v3, v46, 8, v3")
        a("s_lshl_b32 s40, s31, 11"); a(f"s_add_u32 s40, s40, {L_RED}"); a("v_add_u32 v47, s40, v3")
        for m in range(2):
            for t in range(4):
                ac = 48 + (m*4+t)*4
                sel_by_group(a, "v5", [f"v{ac+k}" for k in range(4)], "v46")
                a(f"ds_write_b32 v47, v5 offset:{m*1024 + t*64}")
        s.auxbar(1)
        a("s_lshl_b32 s40, s31, 8"); a(f"s_add_u32 s40, s40, {L_RED}"); a("v_lshl_add_u32 v5, v1, 2, s40")
        for w in range(4):
            a(f"ds_read_b32 v{10+w}, v5 offset:{w*2048}"); a(f"ds_read_b32 v{14+w}, v5 offset:{w*2048+1024}")
        a("s_waitcnt lgkmcnt(0)")
        a("v_add_f32 v10, v10, v11"); a("v_add_f32 v12, v12, v13"); a("v_add_f32 v10, v10, v12")
        a("v_add_f32 v14, v14, v15"); a("v_add_f32 v16, v16, v17"); a("v_add_f32 v14, v14, v16")
        bf16r(a, "v10", "v10"); bf16r(a, "v14", "v14")
        a("v_mul_f32 v11, v10, v10"); a("v_mul_f32 v11, 0x3d372713, v11"); a("v_fma_f32 v11, v11, v10, v10")
        a("v_mul_f32 v11, 0xc0135761, v11"); a("v_exp_f32 v11, v11"); a("v_add_f32 v11, 1.0, v11"); a("v_rcp_f32 v11, v11")
        a("v_mul_f32 v11, v10, v11"); bf16r(a, "v11", "v11")
        a("v_mul_f32 v11, v11, v14"); bf16r(a, "v11", "v11")
        a(f"v_mov_b32_dpp v12, v11 quad_perm:[1,0,3,2] {DPPM}")
        a("v_lshrrev_b32 v13, 16, v11"); a("v_or_b32 v13, v13, v12")
        a(f"v_mov_b32_dpp v14, v13 quad_perm:[2,3,0,1] {DPPM}")
        s.gran(20, "v13", "v14")
        a("s_lshl_b32 s40, s28, 10"); a("s_lshl_b32 s41, s31, 8"); a("s_add_u32 s40, s40, s41"); a(f"s_add_u32 s40, s40, {W_HP}")
        a("v_lshl_add_u32 v6, v1, 2, s40")
        a("s_mov_b32 exec_lo, 0x11111111"); a("s_mov_b32 exec_hi, 0x11111111")
        a(f"global_store_dwordx4 v6, v[20:23], {P_WS} sc1")
        a("s_mov_b64 exec, -1")

    def ffn2(s):
        a = s.a
        a("s_mul_i32 s41, s28, 26"); a("s_lshr_b32 s41, s41, 8"); a("s_mul_i32 s42, s41, 10"); a("s_sub_u32 s43, s28, s42")
        srd(a, 36, P_WD, F*D*2)
        dma_voff(a, "v40", D*2)
        a(f"s_mul_i32 s44, s41, {512*D*2}"); a("s_lshl_b32 s45, s43, 7"); a("s_add_u32 s44, s44, s45")
        a(f"s_mul_i32 s45, s31, {8*D*2}"); a("s_add_u32 s44, s44, s45")
        a("s_lshl_b32 s45, s31, 10"); a(f"s_add_u32 s45, s45, {L_PAN}")
        for i in range(16):
            dma(a, "v40", 36, "s44", "s45", "nt")
            if i < 15: a(f"s_add_u32 s44, s44, {4*8*D*2}"); a("s_add_u32 s45, s45, 4096")
        a("s_lshl_b32 s44, s41, 13"); a(f"s_add_u32 s44, s44, {W_HP}"); a("v_lshl_add_u32 v12, v0, 4, s44"); a("v_add_u32 v13, 4096, v12")
        l = s.poll_begin()
        a(f"global_load_dwordx4 v[16:19], v12, {P_WS} sc1"); a(f"global_load_dwordx4 v[20:23], v13, {P_WS} sc1")
        a("s_waitcnt vmcnt(0)")
        s.check([16,20]); s.poll_end(l, 9, s.opt('slhp', 96))
        a("v_lshrrev_b32 v2, 6, v0"); a("v_bfe_u32 v3, v0, 4, 2"); a("v_and_b32 v4, 15, v0")
        a(f"v_mul_u32_u24 v3, {HTS}, v3"); a("v_lshl_add_u32 v3, v2, 7, v3"); a("v_lshl_add_u32 v3, v4, 3, v3")
        a("v_mov_b32 v17, v18"); a("v_mov_b32 v21, v22")
        a(f"ds_write_b64 v3, v[16:17] offset:{L_HT}"); a(f"ds_write_b64 v3, v[20:21] offset:{L_HT+512}")
        s.auxbar(1)
        bfrag_addr(a, "v41", "s31"); a(f"v_add_u32 v41, {L_PAN}, v41")
        afrag_addr(a, "v45", HTS); a(f"v_add_u32 v45, {L_HT}, v45")
        for half in range(2):
            for k in range(8):
                st = half*8+k; ar, br = 60+8*k, 64+8*k
                a(f"ds_read_b64 v[{ar}:{ar+1}], v45 offset:{st*64}"); a(f"ds_read_b64 v[{ar+2}:{ar+3}], v45 offset:{st*64+32}")
                a(f"ds_read_b64_tr_b16 v[{br}:{br+1}], v41 offset:{st*4096}"); a(f"ds_read_b64_tr_b16 v[{br+2}:{br+3}], v41 offset:{st*4096+2048}")
            a("s_waitcnt lgkmcnt(0)")
            for k in range(8):
                ar, br = 60+8*k, 64+8*k
                a(f"v_mfma_f32_16x16x32_bf16 v[48:51], v[{br}:{br+3}], v[{ar}:{ar+3}], {'0' if (half==0 and k==0) else 'v[48:51]'}")
        a("s_mul_i32 s44, s43, 3"); a("s_add_u32 s44, s44, s41"); a("s_lshl_b32 s44, s44, 10"); a("s_lshl_b32 s45, s31, 6"); a("s_add_u32 s44, s44, s45"); a(f"s_add_u32 s44, s44, {W_G2}")
        a("v_and_b32 v2, 3, v1"); a("v_lshlrev_b32 v2, 8, v2"); a("v_lshrrev_b32 v3, 4, v1"); a("v_lshl_add_u32 v6, v3, 4, v2"); a("v_add_u32 v6, s44, v6")
        for r in range(4): s.enc(f"v{52+r}", f"v{48+r}")
        a("s_mov_b32 exec_lo, 0x000f000f"); a("s_mov_b32 exec_hi, 0x000f000f")
        a(f"global_store_dwordx4 v6, v[52:55], {P_WS} sc1")
        a("s_mov_b64 exec, -1")

    def tail(s):
        a = s.a
        done = s.lab("tail_done")
        nog = s.lab("nog")
        a("s_cmp_ge_u32 s30, 5"); a(f"s_cbranch_scc1 {nog}")
        a("s_cmp_lg_u32 s31, 0"); a(f"s_cbranch_scc1 {nog}")
        a("s_lshr_b32 s50, s28, 3"); a("s_and_b32 s51, s28, 7")
        a("s_lshl_b32 s44, s30, 1"); a("s_lshr_b32 s45, s51, 2"); a("s_add_u32 s44, s44, s45")
        a("s_mul_i32 s44, s44, 3072"); a("s_lshl_b32 s45, s50, 8"); a("s_add_u32 s44, s44, s45")
        a("s_and_b32 s45, s51, 3"); a("s_lshl_b32 s45, s45, 6"); a("s_add_u32 s44, s44, s45"); a(f"s_add_u32 s44, s44, {W_G2}")
        a("v_lshrrev_b32 v10, 2, v1"); a("v_lshlrev_b32 v10, 10, v10"); a("v_and_b32 v11, 3, v1"); a("v_lshl_add_u32 v10, v11, 4, v10"); a("v_add_u32 v10, s44, v10")
        for k in range(4): a(f"v_mov_b32 v{16+k}, 0")
        a("s_mov_b64 exec, 0xfff")
        l = s.poll_begin()
        a(f"global_load_dwordx4 v[16:19], v10, {P_WS} sc1"); a("s_waitcnt vmcnt(0)")
        s.cchk(range(16,20)); s.poll_end(l, 3, 32)
        s.dec(range(16,20))
        a("s_mov_b64 exec, -1")
        gv = [f"v{150+k}" for k in range(4)]
        for k in range(4): a(f"v_mov_b32 {gv[k]}, v{16+k}")
        s.red4(gv, "v7")
        for g in gv:
            bf16r(a, g, g)
            a(f"v_mul_f32 v20, 0xbfb8aa3b, {g}"); a("v_exp_f32 v20, v20"); a("v_add_f32 v20, 1.0, v20"); a("v_rcp_f32 v21, v20")
            a(f"v_mul_f32 v22, {g}, v21"); a(f"v_fma_f32 v23, -v22, v20, {g}"); a("v_fma_f32 v22, v23, v21, v22")
            a(f"v_mul_f32 v23, {g}, v21"); a("v_cmp_u_f32 vcc, v22, v22"); a("v_cndmask_b32 v22, v22, v23, vcc")
            bf16r(a, g, "v22")
        s.out_addr("v158")
        a(f"global_load_dwordx2 v[154:155], v158, {P_X}")
        if s.opt("touch_out"): a(f"global_load_dword v149, v158, {P_OUT}")
        a("s_waitcnt vmcnt(0)")
        a("v_and_b32 v157, 0xffff0000, v155"); a("v_lshlrev_b32 v156, 16, v155"); a("v_and_b32 v155, 0xffff0000, v154"); a("v_lshlrev_b32 v154, 16, v154")
        a.label(nog)
        if s.opt("wolate"):
            nw = s.lab("nowo")
            a("s_cmp_ge_u32 s30, 5"); a(f"s_cbranch_scc1 {nw}")
            s.wait_lds(XCF, s.opt("wolate"), 10, 2)
            s.wo_load()
            a.label(nw)
        s2x = s.lab("s2x")
        a("s_lshl_b32 s40, s28, 2"); a("s_add_u32 s40, s40, s55"); a("s_lshl_b32 s40, s40, 1"); a("s_add_u32 s40, s40, s59"); a("s_lshl_b32 s40, s40, 10"); a(f"s_add_u32 s40, s40, {W_AP}")
        a("v_lshl_add_u32 v6, v1, 4, s40")
        a("v_min_u32 v5, 48, v1"); a("v_lshlrev_b32 v5, 4, v5")
        if s.opt("hwbar", True):
            a("v_mov_b32 v3, 0")
            a("s_barrier")
        else:
            a(f"v_mov_b32 v2, {FLC}"); a("v_mov_b32 v3, 0")
            a(f"s_mov_b32 s79, {SPIN*64}")
            l = s.lab("fl"); x = s.lab("flx")
            a.label(l)
            a("ds_read_b32 v4, v2"); a("s_waitcnt lgkmcnt(0)"); a("v_readfirstlane_b32 s78, v4")
            a("s_cmp_ge_u32 s78, 4"); a(f"s_cbranch_scc1 {x}")
            a("s_sleep 1")
            a("s_sub_u32 s79, s79, 1"); a(f"s_cbranch_scc0 {l}")
            s.err(4)
            a.label(x)
        a("s_cmp_lg_u32 s31, 0"); a(f"s_cbranch_scc1 {s2x}")
        s.stamp(3)
        if s.opt("tailst"): s.stamp(1, True)
        if s.opt("dbgst"):
            s.dstamp(2); a("v_mov_b32 v3, 0")
        for w in range(4):
            a(f"ds_read_b64 v[{28+2*w}:{29+2*w}], v3 offset:{L_FL+w*FLS+768}")
        for w in range(4):
            a(f"ds_read_b128 v[{12+4*w}:{15+4*w}], v5 offset:{L_FL+w*FLS}")
        a("s_waitcnt lgkmcnt(4)")
        a("v_max_f32 v36, v28, v30"); a("v_max3_f32 v36, v36, v32, v34")
        a("v_add_u32 v36, 0x200, v36"); a("v_and_b32 v36, 0xfffffc00, v36")
        for w in range(4):
            a(f"v_sub_f32 v{28+2*w}, v{28+2*w}, v36"); a(f"v_exp_f32 v{28+2*w}, v{28+2*w}")
        a("v_mul_f32 v37, v29, v28")
        for w in range(1,4): a(f"v_fmac_f32 v37, v{29+2*w}, v{28+2*w}")
        a("s_waitcnt lgkmcnt(0)")
        for e in range(4):
            a(f"v_mul_f32 v{40+e}, v{12+e}, v28")
            for w in range(1,4): a(f"v_fmac_f32 v{40+e}, v{12+4*w+e}, v{28+2*w}")
        a("v_cmp_eq_u32 vcc, 48, v1"); a("v_cndmask_b32 v40, v40, v36, vcc"); a("v_cndmask_b32 v41, v41, v37, vcc")
        for e in range(4): s.enc(f"v{44+e}", f"v{40+e}")
        a("s_mov_b64 exec, 0x1ffffffffffff" if False else "s_mov_b32 exec_hi, 0x1ffff")
        a(f"global_store_dwordx4 v6, v[44:47], {P_WS} sc1")
        if s.opt("tailst"): s.stamp(2, True)
        a("s_mov_b64 exec, -1")
        a.label(s2x)
        a("s_cmp_ge_u32 s30, 5"); a(f"s_cbranch_scc1 {done}")
        a("s_lshl_b32 s40, s28, 2"); a("s_add_u32 s40, s40, s31"); a("s_lshl_b32 s40, s40, 11"); a(f"s_add_u32 s40, s40, {W_AP}")
        a("v_min_u32 v5, 48, v1"); a("v_lshl_add_u32 v10, v5, 4, s40")
        a("v_lshrrev_b32 v4, 4, v1"); a("v_lshlrev_b32 v4, 6, v4"); a("v_and_b32 v6, 1, v1"); a("v_lshl_add_u32 v4, v6, 5, v4")
        a("v_bfe_u32 v6, v1, 1, 3"); a("v_add_u32 v4, v4, v6"); a("v_lshlrev_b32 v4, 1, v4")
        a(f"s_mul_i32 s41, s31, {OS}"); a("v_add_u32 v47, s41, v4")
        if s.opt("hdrpoll"):
            a("s_add_u32 s41, s40, 768"); a("v_and_b32 v11, 1, v1"); a("v_lshlrev_b32 v11, 10, v11"); a("v_add_u32 v11, s41, v11")
            a("s_mov_b64 exec, 3")
            l = s.poll_begin()
            a(f"global_load_dwordx4 v[20:23], v11, {P_WS} sc1"); a("s_waitcnt vmcnt(0)")
            s.cchk(range(20,24)); s.poll_end(l, 11, s.opt("hdrpoll"))
            a("s_mov_b64 exec, -1")
        if s.opt("pipe3"):
            def ld3(r):
                a(f"global_load_dwordx4 v[{r}:{r+3}], v10, {P_WS} sc1"); a(f"global_load_dwordx4 v[{r+4}:{r+7}], v10, {P_WS} offset:1024 sc1")
            s.pipe_poll(ld3, 2, 8, 100, 108, 20, 5)
            if s.opt("tailst"): s.stamp(3, True)
        else:
            l = s.poll_begin()
            a(f"global_load_dwordx4 v[20:23], v10, {P_WS} sc1"); a(f"global_load_dwordx4 v[24:27], v10, {P_WS} offset:1024 sc1")
            a("s_waitcnt vmcnt(0)")
            s.cchk(range(20,28)); s.poll_end(l, 5, s.opt("sl3", 1))
            if s.opt("tailst"): s.stamp(3, True)
            s.dec(range(20,28))
        a("v_readlane_b32 s40, v20, 48"); a("v_readlane_b32 s41, v21, 48"); a("v_readlane_b32 s42, v24, 48"); a("v_readlane_b32 s43, v25, 48")
        a("v_mov_b32 v30, s40"); a("v_mov_b32 v31, s42"); a("v_max_f32 v32, v30, v31")
        a("v_sub_f32 v30, v30, v32"); a("v_sub_f32 v31, v31, v32"); a("v_exp_f32 v30, v30"); a("v_exp_f32 v31, v31")
        a("v_mul_f32 v33, s41, v30"); a("v_fmac_f32 v33, s43, v31"); a("v_rcp_f32 v34, v33")
        for e in range(4):
            a(f"v_mul_f32 v{20+e}, v{20+e}, v30"); a(f"v_fmac_f32 v{20+e}, v{24+e}, v31")
        for e in range(4):
            a(f"v_mul_f32 v9, v{20+e}, v34"); a(f"v_fma_f32 v8, -v9, v33, v{20+e}"); a(f"v_fma_f32 v{20+e}, v8, v34, v9")
        a("v_cvt_pk_bf16_f32 v20, v20, v21"); a("v_cvt_pk_bf16_f32 v22, v22, v23")
        a("s_mov_b32 exec_hi, 0xffff")
        a(f"ds_write_b16 v47, v20 offset:{L_OT}"); a(f"ds_write_b16_d16_hi v47, v20 offset:{L_OT+16}")
        a(f"ds_write_b16 v47, v22 offset:{L_OT+32}"); a(f"ds_write_b16_d16_hi v47, v22 offset:{L_OT+48}")
        a("s_mov_b64 exec, -1")
        afrag_addr(a, "v45", OS); a(f"v_add_u32 v45, {L_OT}, v45")
        a("s_lshl_b32 s40, s30, 16"); a("s_lshl_b32 s41, s28, 9"); a("s_add_u32 s40, s40, s41"); a("s_lshl_b32 s41, s31, 6"); a("s_add_u32 s40, s40, s41"); a(f"s_add_u32 s40, s40, {W_Y}")
        a("v_and_b32 v10, 3, v1"); a("v_lshlrev_b32 v10, 14, v10"); a("v_lshrrev_b32 v11, 4, v1"); a("v_lshl_add_u32 v10, v11, 4, v10")
        a("v_bfe_u32 v11, v1, 2, 1"); a("v_lshl_add_u32 v10, v11, 8, v10"); a("v_add_u32 v46, s40, v10")
        a("v_mov_b32 v44, v11")
        if s.opt("hwbar", True):
            a("s_waitcnt lgkmcnt(0)"); a("s_barrier")
        else: s.auxbar()
        s.stamp(4, True)
        for k in range(6):
            ar = 60+4*k
            a(f"ds_read_b64 v[{ar}:{ar+1}], v45 offset:{k*64}"); a(f"ds_read_b64 v[{ar+2}:{ar+3}], v45 offset:{k*64+32}")
        for k in range(6):
            ar = 60+4*k
            a(f"s_waitcnt lgkmcnt({2*(5-k)})")
            for p in range(2):
                br = s.WOB + p*24 + 4*k; ac = 48+4*p
                a(f"v_mfma_f32_16x16x32_bf16 v[{ac}:{ac+3}], v[{br}:{br+3}], v[{ar}:{ar+3}], {'0' if k==0 else f'v[{ac}:{ac+3}]'}")
        a("v_cmp_eq_u32 vcc, 1, v44")
        for r in range(4): a(f"v_cndmask_b32 v{12+r}, v{48+r}, v{52+r}, vcc")
        for r in range(4): s.enc(f"v{16+r}", f"v{12+r}")
        a("s_mov_b32 exec_lo, 0x00ff00ff"); a("s_mov_b32 exec_hi, 0x00ff00ff")
        a(f"global_store_dwordx4 v46, v[16:19], {P_WS} sc1")
        if s.opt("tailst"): s.stamp(5, True)
        a("s_mov_b64 exec, -1")
        if s.opt("dbgst"):
            l3 = s.lab("ds"); a("s_cmp_lg_u32 s31, 0"); a(f"s_cbranch_scc1 {l3}"); s.dstamp(3); a.label(l3)
        a("s_cmp_lg_u32 s31, 0"); a(f"s_cbranch_scc1 {done}")
        a("s_lshl_b32 s40, s30, 2"); a("s_add_u32 s40, s40, s50"); a("s_lshl_b32 s40, s40, 14")
        a("s_lshl_b32 s41, s51, 6"); a("s_add_u32 s40, s40, s41"); a(f"s_add_u32 s40, s40, {W_Y}")
        a("v_lshrrev_b32 v10, 2, v1"); a("v_lshlrev_b32 v10, 9, v10"); a("v_and_b32 v11, 3, v1"); a("v_lshl_add_u32 v10, v11, 4, v10"); a("v_add_u32 v10, s40, v10")
        a("v_add_u32 v11, 8192, v10")
        s.out_addr("v158")
        if s.opt("pipe5"):
            def ld5(r):
                a(f"global_load_dwordx4 v[{r}:{r+3}], v10, {P_WS} sc1"); a(f"global_load_dwordx4 v[{r+4}:{r+7}], v11, {P_WS} sc1")
            s.pipe_poll(ld5, 2, 8, 116, 124, 16, 6)
            if s.opt("tailst"): s.stamp(6, True)
        else:
            l = s.poll_begin()
            a(f"global_load_dwordx4 v[16:19], v10, {P_WS} sc1"); a(f"global_load_dwordx4 v[20:23], v11, {P_WS} sc1")
            a("s_waitcnt vmcnt(0)")
            s.cchk(range(16,24)); s.poll_end(l, 6, s.opt("sl5", 1))
            if s.opt("tailst"): s.stamp(6, True)
            s.dec(range(16,24))
        for k in range(4): a(f"v_add_f32 v{16+k}, v{16+k}, v{20+k}")
        s.red4([f"v{16+k}" for k in range(4)], "v7")
        for k in range(4):
            sv = f"v{16+k}"
            bf16r(a, sv, sv)
            a(f"v_mul_f32 {sv}, {sv}, v{150+k}"); bf16r(a, sv, sv)
            a(f"v_add_f32 {sv}, v{154+k}, {sv}")
        a("v_cvt_pk_bf16_f32 v20, v16, v17"); a("v_cvt_pk_bf16_f32 v21, v18, v19")
        a("s_mov_b64 exec, 0xf")
        a(f"global_store_dwordx2 v158, v[20:21], {P_OUT} {s.opt('outflags','')}")
        a("s_mov_b64 exec, -1")
        s.dstamp(4)
        a("s_cmp_eq_u32 s28, 0"); a(f"s_cbranch_scc0 {done}")
        a("s_cmp_eq_u32 s30, 0"); a(f"s_cbranch_scc0 {done}")
        a(f"v_mov_b32 v2, {W_EPOCH}"); a(f"v_mov_b32 v3, {ST}")
        a("s_mov_b64 exec, 1"); a(f"global_store_dword v2, v3, {P_WS} sc1"); a("s_mov_b64 exec, -1")
        a.label(done)
    def out_addr(s, dst):
        a = s.a
        a("s_lshl_b32 s44, s30, 7"); a("s_lshl_b32 s45, s51, 4"); a("s_add_u32 s44, s44, s45")
        a("s_mul_i32 s45, s50, 640"); a("s_add_u32 s44, s44, s45"); a("s_lshl_b32 s44, s44, 1")
        a(f"v_and_b32 {dst}, 3, v1"); a(f"v_lshl_add_u32 {dst}, {dst}, 3, s44")

    def trace(s):
        if s.opt("trace"):
            a = s.a
            a("s_memrealtime s[88:89]"); a("s_waitcnt lgkmcnt(0)"); a("s_mov_b32 m0, s90"); a("v_writelane_b32 v250, s88, m0"); a("s_add_u32 s90, s90, 1")
    def sc(s, d):
        s.sc_(d); s.trace()
    def sc_(s, d):
        if s.opt("nocompute"): s.a(f"v_xor_b32 v13, v{kreg(d,0,0)}, v{vreg(d,1,2)+3}")
        elif s.opt("umax", True): stage_compute_u(s.a, d)
        else: stage_compute(s.a, d)
    def sig_exhaust(s):
        if s.opt("xst"): s.stamp(4)
        if not s.opt("wolate"): return
        a = s.a
        a(f"v_mov_b32 v2, {XCF}"); a("v_mov_b32 v3, 1")
        a("s_mov_b64 exec, 1"); a("ds_add_u32 v2, v3"); a("s_mov_b64 exec, -1")
    def wait_lds(s, addr, n, code, sleep=1):
        a = s.a
        a(f"v_mov_b32 v2, {addr}"); a(f"s_mov_b32 s79, {SPIN*64}")
        l = s.lab("wl"); x = s.lab("wlx")
        a.label(l)
        a("ds_read_b32 v4, v2"); a("s_waitcnt lgkmcnt(0)"); a("v_readfirstlane_b32 s78, v4")
        a(f"s_cmp_ge_u32 s78, {n}"); a(f"s_cbranch_scc1 {x}")
        a(f"s_sleep {sleep}")
        a("s_sub_u32 s79, s79, 1"); a(f"s_cbranch_scc0 {l}")
        s.err(code)
        a.label(x)
    def sc1(s, d):
        if s.opt("nocompute"): s.a(f"v_xor_b32 v13, v{kreg(d,0,0)}, v{vreg(d,0,2)+3}")
        else: stage_compute1(s.a, d)
    def soff(s, sid, dst):
        s.a(f"s_mul_i32 {dst}, {sid}, 6144"); s.a(f"s_add_u32 {dst}, {dst}, s52")
    def streaming(s):
        a = s.a; Dp = 2; S = s.S; cap = s.cap
        a("s_sub_u32 s31, s31, 4")
        srd(a, 32, P_K, KV_BYTES); srd(a, 36, P_V, KV_BYTES)
        a("v_lshrrev_b32 v2, 3, v1"); a("v_and_b32 v3, 7, v1"); a("v_mul_u32_u24 v2, 384, v2"); a("v_lshl_add_u32 v10, v3, 4, v2")
        a("s_mul_i32 s52, s28, 1572864"); a("s_mul_i32 s40, s55, 50331648"); a("s_add_u32 s52, s52, s40")
        a("s_lshl_b32 s53, s59, 2"); a("s_add_u32 s53, s53, s31")
        a("s_lshl_b32 s40, s28, 2"); a("s_add_u32 s40, s40, s55"); a("s_lshl_b32 s40, s40, 8"); a(f"s_add_u32 s40, s40, {W_CNT}")
        a("v_mov_b32 v8, s40"); a("v_mov_b32 v9, 1")
        SF = s.opt("SF", S)
        a(f"s_mov_b32 s91, {S}")
        if SF != S:
            a("s_lshr_b32 s40, s30, 1"); a("s_cmp_eq_u32 s40, 3"); a(f"s_cselect_b32 s91, {SF}, {S}")
            a("s_cmp_ge_u32 s28, 24"); a(f"s_cselect_b32 s91, {S}, s91")
        a("s_lshl_b32 s92, s91, 3")
        early = s.opt("early", True)
        if not early: a("s_barrier")
        if s.opt("nostream"):
            if early: a("s_barrier")
            a("s_barrier"); s.write_stamps(); a("s_endpgm"); return
        nh = 0
        deferred = []
        for d in range(cap):
            s.soff("s53", "s54"); a("s_add_u32 s53, s53, 8")
            for which, sr in ((kreg, 32), (vreg, 36)):
                def half(which=which, sr=sr, d=d):
                    for g in range(2):
                        for j in range(3):
                            r = which(d,g,j); a(f"buffer_load_dwordx4 v[{r}:{r+3}], v10, s[{sr}:{sr+3}], s54 offen offset:{g*3072+j*128} nt")
                if s.opt("v1late") and d == cap-1 and which is vreg:
                    deferred.append(half); continue
                if nh == 1 and s.opt("warm_ws"): a(f"global_load_dword v7, v8, {P_WS}")
                if nh == 1 and early: a("s_barrier")
                if nh and s.pace is not None: a(f"s_waitcnt vmcnt({s.pace})")
                nh += 1
                half()
        state_reset(a)
        if s.opt("trace"): a("s_mov_b32 s90, 0"); a("v_mov_b32 v250, 0")
        a("s_barrier")
        for f in deferred: f()
        s.stamp(1)
        a("v_and_b32 v2, 7, v1"); a("v_lshlrev_b32 v2, 4, v2")
        for j in range(3): a(f"ds_read_b128 v[{VQ+4*j}:{VQ+4*j+3}], v2 offset:{L_QT+j*128}")
        a("s_waitcnt lgkmcnt(0)")
        def issue(d):
            s.soff("s53", "s54"); stage_loads(a, d, "s54"); a("s_add_u32 s53, s53, 8")
        def atomic(d):
            a("s_mov_b64 exec, 1"); a(f"global_atomic_add v{4+d}, v8, v9, {P_WS} sc0"); a("s_mov_b64 exec, -1")
        p = 0
        issued = cap
        if cap > 2:
            for d in range(2):
                a(f"s_waitcnt vmcnt({12*(cap-1)})"); s.sc(d); issue(d); issued += 1; p += 1
            for d in range(2, cap):
                a(f"s_waitcnt vmcnt({12*(cap-1-d+2)})"); s.sc(d); p += 1
        last_static = S if s.dyn else 32
        n_plain = (last_static - (2 if s.dyn else 0)) - issued
        assert n_plain >= 0 and n_plain % 2 == 0, n_plain
        if n_plain:
            if s.dyn:
                a(f"s_sub_u32 s56, s91, {2 + issued}"); a("s_lshr_b32 s56, s56, 1")
            else: a(f"s_mov_b32 s56, {n_plain//2}")
            a.label("S_loop")
            for d in range(Dp):
                a("s_waitcnt vmcnt(12)"); s.sc(d); issue(d)
            a("s_sub_u32 s56, s56, 1"); a("s_cmp_lg_u32 s56, 0"); a("s_cbranch_scc1 S_loop")
        if not s.dyn:
            a("s_waitcnt vmcnt(12)"); s.sc(0); a("s_waitcnt vmcnt(0)"); s.sc(1)
        elif s.opt("la1"):
            a("s_waitcnt vmcnt(12)"); s.sc(0); s.soff("s53", "s54"); stage_loads(a, 0, "s54"); a("s_add_u32 s53, s53, 8")
            a("s_waitcnt vmcnt(12)"); s.sc(1); s.soff("s53", "s54"); atomic(0); stage_loads(a, 1, "s54")
            a.label("S_dyn")
            for d in range(Dp):
                a("s_waitcnt vmcnt(12)"); s.sc(d)
                a(f"v_readfirstlane_b32 s53, v{4+d}"); a("s_add_u32 s53, s53, s92")
                a("s_cmp_ge_u32 s53, 256"); a(f"s_cbranch_scc1 S_drain{d}")
                s.soff("s53", "s54"); atomic(1-d); stage_loads(a, d, "s54")
            a("s_branch S_dyn")
            for d in range(Dp):
                a.label(f"S_drain{d}")
                s.sig_exhaust()
                a("s_waitcnt vmcnt(0)"); s.sc(1-d)
                if d == 0: a("s_branch S_done")
            a.label("S_done")
        elif not s.opt("g1", True):
            for d in range(Dp):
                a(f"s_waitcnt vmcnt({12 + d})"); s.sc(d)
                s.soff("s53", "s54"); atomic(d); stage_loads(a, d, "s54"); a("s_add_u32 s53, s53, 8")
            a.label("S_dyn")
            for d in range(Dp):
                a("s_waitcnt vmcnt(13)"); s.sc(d)
                a(f"v_readfirstlane_b32 s53, v{4+d}"); a("s_add_u32 s53, s53, s92")
                a("s_cmp_ge_u32 s53, 256"); a(f"s_cbranch_scc1 S_drain{d}")
                s.soff("s53", "s54"); atomic(d); stage_loads(a, d, "s54")
            a("s_branch S_dyn")
            for d in range(Dp):
                a.label(f"S_drain{d}")
                s.sig_exhaust()
                a("s_waitcnt vmcnt(0)"); s.sc(1-d)
                if d == 0: a("s_branch S_done")
            a.label("S_done")
        else:
            for d in range(Dp):
                a(f"s_waitcnt vmcnt({12 + d})"); s.sc(d)
                s.soff("s53", "s54"); atomic(d); stage_loads(a, d, "s54"); a("s_add_u32 s53, s53, 8")
            def next1(d, drain):
                a(f"v_readfirstlane_b32 s53, v{4+d}"); a("s_add_u32 s53, s53, s92"); a("s_add_u32 s53, s53, s92")
                a("s_cmp_ge_u32 s53, 512"); a(f"s_cbranch_scc1 {drain}")
                a("s_mul_i32 s54, s53, 3072"); a("s_add_u32 s54, s54, s52"); atomic(d); stage_loads1(a, d, "s54")
            a("s_waitcnt vmcnt(13)"); s.sc(0); next1(0, "S_drainA")
            a("s_waitcnt vmcnt(7)"); s.sc(1); next1(1, "S_drain1")
            a.label("S_dyn")
            for d in range(Dp):
                a("s_waitcnt vmcnt(7)"); s.sc1(d); next1(d, f"S_drain{d}")
            a("s_branch S_dyn")
            a.label("S_drainA"); a("s_waitcnt vmcnt(0)"); s.sc(1); a("s_branch S_done")
            a.label("S_drain0"); a("s_waitcnt vmcnt(0)"); s.sc1(1); a("s_branch S_done")
            a.label("S_drain1"); a("s_waitcnt vmcnt(0)"); s.sc1(0)
            a.label("S_done")
        s.stamp(2)
        if s.opt("trace"):
            a("s_lshl_b32 s40, s2, 2"); a("s_add_u32 s40, s40, s31"); a("s_lshl_b32 s40, s40, 8"); a("s_add_u32 s40, s40, 0x800000")
            a("v_lshl_add_u32 v2, v1, 2, s40"); a(f"global_store_dword v2, v250, {P_WS}")
        s.flush3()
        a("s_waitcnt lgkmcnt(0)")
        if s.opt("hwbar", True):
            s.stamp(3)
            a("s_barrier")
            s.write_stamps(); a("s_endpgm"); return
        a(f"v_mov_b32 v2, {FLC}"); a("v_mov_b32 v3, 1")
        a("s_mov_b64 exec, 1"); a("ds_add_u32 v2, v3"); a("s_mov_b64 exec, -1")
        s.stamp(3)
        s.write_stamps()
        a("s_endpgm")
    def flush3(s):
        a = s.a
        a("v_mov_b32 v16, v11")
        if not (s.opt("umax", True) and not s.opt("g1", True)):
            a(f"v_max_f32_dpp v16, v16, v16 row_ror:8 {DPPM}")
            a("v_mov_b32 v17, v16"); a("v_permlane16_swap_b32 v16, v17"); a("v_max_f32 v16, v16, v17")
            a("v_mov_b32 v17, v16"); a("v_permlane32_swap_b32 v16, v17"); a("v_max_f32 v16, v16, v17")
            a("v_sub_f32 v18, v11, v16"); a("v_exp_f32 v18, v18")
            a("v_mul_f32 v12, v12, v18")
            for k in range(12):
                a(f"v_pk_mul_f32 v[{VACC+2*k}:{VACC+2*k+1}], v[{VACC+2*k}:{VACC+2*k+1}], v[18:19] op_sel_hi:[1,0]")
        a(f"v_add_f32_dpp v12, v12, v12 row_ror:8 {DPPM}")
        for i in range(12): a(f"v_permlane32_swap_b32 v{VACC+i}, v{VACC+i+12}")
        a("v_mov_b32 v17, v12")
        for i in range(12): a(f"v_add_f32 v{VACC+i}, v{VACC+i}, v{VACC+i+12}")
        a("v_permlane16_swap_b32 v12, v17")
        for i in range(6): a(f"v_permlane16_swap_b32 v{VACC+i}, v{VACC+i+6}")
        a("v_add_f32 v12, v12, v17"); a("v_mov_b32 v17, v12")
        for i in range(6): a(f"v_add_f32 v{VACC+i}, v{VACC+i}, v{VACC+i+6}")
        a("v_permlane32_swap_b32 v12, v17")
        for i in range(6): a(f"v_add_f32_dpp v{VACC+i}, v{VACC+i}, v{VACC+i} row_ror:8 {DPPM}")
        a("v_add_f32 v12, v12, v17")
        a(f"s_mul_i32 s40, s31, {FLS}"); a(f"s_add_u32 s40, s40, {L_FL}")
        a("v_lshrrev_b32 v2, 4, v1"); a("v_mul_u32_u24 v2, 192, v2"); a("v_and_b32 v3, 7, v1"); a("v_lshl_add_u32 v2, v3, 2, v2"); a("v_add_u32 v2, s40, v2")
        for i in range(6): a(f"ds_write_b32 v2, v{VACC+i} offset:{i*32}")
        a("v_mov_b32 v3, s40"); a("v_mov_b32 v17, v12")
        a("ds_write_b64 v3, v[16:17] offset:768")

    def build(s):
        a = s.a; kernel_header(a, KN)
        a("s_cmp_ge_u32 s2, 256"); a("s_cbranch_scc1 L_end")
        s.stamp(0)
        load_args(a); lane_setup(a); s.ids3()
        a("s_waitcnt lgkmcnt(0)")
        a("s_cmp_ge_u32 s31, 4"); a("s_cbranch_scc1 L_stream")
        s.in_aux = True
        if s.prio: a("s_setprio 2")
        if s.opt("dbgst"):
            l = s.lab("ds"); a("s_cmp_lg_u32 s31, 0"); a(f"s_cbranch_scc1 {l}"); s.dstamp(0, True); a.label(l)
        a(f"s_load_dword s60, {P_WS}, {W_EPOCH}")
        a("s_mov_b32 s58, 0")
        a(f"v_mov_b32 v2, {L_CTR}"); a("v_mov_b32 v4, 0"); a("v_mov_b32 v5, 0"); a("v_mov_b32 v6, 0"); a("v_mov_b32 v7, 0")
        a("ds_write_b128 v2, v[4:7]"); a("ds_write_b128 v2, v[4:7] offset:16")
        def roles67():
            a("s_cmp_eq_u32 s30, 7"); a("s_cbranch_scc0 A_n0")
            ln_issue(a)
            a.label("A_n0")
            a("s_waitcnt lgkmcnt(0)"); a("s_barrier")
            s.tag_setup()
            a("s_cmp_eq_u32 s30, 7"); a("s_cbranch_scc0 A_n1")
            a("s_waitcnt vmcnt(0)"); ln_compute(a)
            a.label("A_n1")
            s.q_gather(); s.stamp(6); a("s_barrier")
            s.stamp(1)
            s.auxbar(1)
            a("s_cmp_eq_u32 s30, 7"); a("s_cbranch_scc1 A_f1")
            if s.opt("prole", True): a("s_branch A_tail")
            a.label("A_f2")
            a("s_cmp_ge_u32 s28, 30"); a("s_cbranch_scc1 A_tail")
            if not s.opt("noffn"): s.ffn2()
            a("s_branch A_tail")
            a.label("A_f1")
            a("s_cmp_ge_u32 s28, 24"); a("s_cbranch_scc1 A_tail")
            if not s.opt("noffn"): s.ffn1()
            a("s_branch A_tail")
        lay2 = s.opt("layout2", True)
        if lay2:
            a("s_cmp_ge_u32 s30, 6"); a("s_cbranch_scc1 A_n")
        else:
            a("s_cmp_lt_u32 s30, 6"); a("s_cbranch_scc1 A_q")
            roles67()
        a.label("A_q")
        ln_issue(a)
        l = s.lab("cz")
        a("s_cmp_lg_u32 s30, 0"); a(f"s_cbranch_scc1 {l}"); a("s_cmp_lg_u32 s31, 0"); a(f"s_cbranch_scc1 {l}")
        a("s_lshl_b32 s40, s28, 10"); a(f"s_add_u32 s40, s40, {W_CNT}"); a("v_lshl_add_u32 v2, v1, 8, s40"); a("v_mov_b32 v4, 0")
        a("s_mov_b64 exec, 0xf"); a(f"global_store_dword v2, v4, {P_WS} sc1"); a("s_mov_b64 exec, -1")
        a.label(l)
        q_issue(a)
        pro = s.opt("prost")
        late2 = s.opt("late2")
        if pro: s.stamp(1)
        a("s_waitcnt lgkmcnt(0)")
        if not late2: a("s_barrier")
        s.tag_setup()
        a("s_waitcnt vmcnt(10)")
        if pro: s.stamp(3)
        ln_compute(a)
        if pro: s.stamp(4)
        a("s_waitcnt vmcnt(0)")
        if pro: s.stamp(5)
        if late2:
            a("s_waitcnt lgkmcnt(0)"); a("s_barrier")
        else: s.auxbar()
        if s.opt("qcompact"): s.q_compute_t()
        else: q_compute(a); s.q_publish()
        s.stamp(2)
        s.q_gather(); s.stamp(6); a("s_barrier")
        if s.opt("dbgst"):
            l2 = s.lab("ds"); a("s_cmp_lg_u32 s31, 0"); a(f"s_cbranch_scc1 {l2}"); s.dstamp(1); a.label(l2)
        if pro:
            s.write_stamps(); a("s_endpgm")
        s.stamp(1)
        a("s_cmp_ge_u32 s30, 5"); a("s_cbranch_scc1 A_f2" if s.opt("prole", True) else "s_cbranch_scc1 A_tail")
        if not s.opt("nowo") and not s.opt("wolate"): s.wo_load()
        a.label("A_tail")
        if s.opt("touch_kv"):
            lt = s.lab("tk"); a("s_cmp_lg_u32 s31, 3"); a(f"s_cbranch_scc1 {lt}")
            a("s_mul_i32 s40, s28, 1572864"); a("s_mul_i32 s41, s55, 50331648"); a("s_add_u32 s40, s40, s41"); a("s_add_u32 s40, s40, 1572480")
            a("v_mov_b32 v148, s40")
            a("s_mov_b64 exec, 1"); a(f"global_load_dword v147, v148, {P_K}"); a(f"global_load_dword v146, v148, {P_V}"); a("s_mov_b64 exec, -1")
            a.label(lt)
        if s.opt("noaux"): s.write_stamps(); a("s_endpgm")
        s.tail()
        s.stamp(5)
        s.write_stamps()
        a("s_endpgm")
        a.label("L_stream")
        s.in_aux = False
        s.streaming()
        if lay2:
            s.in_aux = True
            a.label("A_n"); roles67()
        a.label("L_end"); a("s_endpgm")
        body = a.finalize()
        doc = DOC.strip("\n").split("\n") if s.opt("doc") else []
        hdr = [f"; @launch grid=(256,1,1) block=(512,1,1) lds={LDS_BYTES}"] + doc + ['.amdgcn_target "amdgcn-amd-amdhsa--gfx950"', ".text"]
        return "\n".join(hdr) + "\n" + body + '.section .rodata,"a"\n.p2align 6\n' + kernel_desc(KN, 256, 96) + "\n"

if __name__ == "__main__":
    import build as bld, subprocess
    names = []
    cfgs = {"v4": dict(), "v4_st": dict(stamps=True)}
    if len(sys.argv) > 1:
        cfgs = eval(open(sys.argv[1]).read())
    for name, kw in cfgs.items():
        open(name+".s","w").write(G(**kw).build()); bld.build(name+".s"); names.append(name)
    subprocess.run(["python3","push.py"]+names)
```
